```python
import torch

def _softmax(x, axis=-1):
    return torch.softmax(x, dim=axis)
def _gelu(x):
    return torch.nn.functional.gelu(x, approximate="tanh")
def _silu(x):
    return torch.nn.functional.silu(x)
def _sigmoid(x):
    return torch.sigmoid(x)
def _layernorm(x, axis=-1, eps=1e-5):
    m = x.mean(dim=axis, keepdim=True)
    v = x.var(dim=axis, keepdim=True, unbiased=False)
    return (x - m) / torch.sqrt(v + eps)
def _scatter_add(tgt, idx, src, axis=0):
    return tgt.clone().index_add_(axis, idx, src)
def _segment_sum(src, seg, n):
    out = torch.zeros((n,) + src.shape[1:], dtype=src.dtype)
    return out.index_add_(0, seg, src)
def _pad(x, pw):
    flat = tuple(v for pair in reversed(pw) for v in pair)
    return torch.nn.functional.pad(x, flat)

kernel_name = 'standalone__weight_only_int_omniquant__prompt'

def setup_inputs():

    _w = (lambda a: (lambda t: t.to(torch.bfloat16) if t.is_floating_point() else t)(torch.as_tensor(a)))
    B, S, D, F = 1, 2048, 576, 4608
    bits = 8
    G = -1 if -1 > 0 else D
    D = (D // G) * G
    ng = D // G
    qmax = (1 << bits) - 1
    qw = torch.randint(0, qmax + 1, (D, F)).to(torch.int32)
    scales = (torch.abs((lambda *s: torch.randn(*s, dtype=torch.bfloat16) * 0.05)(ng, F)) * 0.05 + 0.01).to(float)
    zeros = torch.randint(0, qmax + 1, (ng, F)).to(float)
    act_scale = (torch.abs((lambda *s: torch.randn(*s, dtype=torch.bfloat16) * 0.05)(D)) * 0.5 + 0.5).to(float)
    return {
        "x": _w((lambda *s: torch.randn(*s, dtype=torch.bfloat16) * 0.05)(B, S, D)),
        "qw": _w(qw),
        "scales": _w(scales),
        "zeros": _w(zeros),
        "act_scale": _w(act_scale),
    }

def reference(x, qw, scales, zeros, act_scale):
    B, S, D = x.shape
    ng, F = scales.shape
    G = D // ng
    s = (lambda x, n, axis: torch.repeat_interleave(x, n, dim=axis))(scales, G, axis=0)
    z = (lambda x, n, axis: torch.repeat_interleave(x, n, dim=axis))(zeros, G, axis=0)
    w = ((lambda x, dt: x.to(dt))(qw, x.dtype) - z) * s
    xs = x * (lambda x, dt: x.to(dt))(act_scale, x.dtype)
    return torch.einsum("bsd,df->bsf", xs, w)
```

```python
NAME = "standalone__weight_only_int_omniquant__prompt"
HEADER = """; Kernarg layout for this problem (64 bytes, ptrs only, base s[0:1]):
"""
M, K, N = 2048, 576, 4608
X_BYTES = M*K*2
W_BYTES = K*N*4
S_BYTES = N*2
A_BYTES = K*2
O_BYTES = M*N*2

class Asm:
    def __init__(self):
        self.lines = []
    def __call__(self, s):
        for l in s.split("\n"):
            self.lines.append("    " + l.strip() if l.strip() and not l.strip().endswith(":") else l.strip())
    def label(self, s):
        self.lines.append(s + ":")
    def c(self, s):
        self.lines.append("    ; " + s)
    def text(self):
        return "\n".join(self.lines) + "\n"

def wrap(body, grid, block, lds, nvgpr, nsgpr, accum_offset, extra_kd="", pre_align=""):
    s = HEADER
    s += f"; @launch grid=({grid[0]},{grid[1]},{grid[2]}) block=({block},1,1) lds={lds}\n"
    s += f""".amdgcn_target "amdgcn-amd-amdhsa--gfx950"
.text
.globl {NAME}_kernel
{pre_align}.p2align 8
.type {NAME}_kernel,@function
{NAME}_kernel:
"""
    s += body
    s += f"""s_endpgm
.section .rodata,"a"
.p2align 6
.amdhsa_kernel {NAME}_kernel
  .amdhsa_next_free_vgpr {nvgpr}
  .amdhsa_next_free_sgpr {nsgpr}
  .amdhsa_accum_offset {accum_offset}
  .amdhsa_group_segment_fixed_size 0
  .amdhsa_kernarg_size 64
  .amdhsa_user_sgpr_count 2
  .amdhsa_user_sgpr_kernarg_segment_ptr 1
  .amdhsa_system_sgpr_workgroup_id_x 1
{extra_kd}.end_amdhsa_kernel
"""
    return s
```

```python
import sys
from common import *
mode = sys.argv[1] if len(sys.argv) > 1 else "faithful"
out = sys.argv[2] if len(sys.argv) > 2 else f"cdna_kernels/{NAME}.s"
a = Asm()
a("s_cmp_ge_u32 s2, 576")
a("s_cbranch_scc1 L_end")
a("s_load_dwordx4 s[4:7], s[0:1], 0")
a("s_load_dwordx4 s[8:11], s[0:1], 16")
a("s_load_dwordx4 s[12:15], s[0:1], 32")
a("v_lshrrev_b32 v1, 6, v0")
a("v_and_b32 v0, 63, v0")
a("s_nop 0")
a("v_readfirstlane_b32 s3, v1")
a("s_lshl_b32 s40, s2, 2")
a("s_add_u32 s40, s40, s3")
a("s_mov_b32 s41, %d" % ((2**32 + 71)//72))
a("s_mul_hi_u32 s42, s40, s41")
a("s_mul_i32 s43, s42, 72")
a("s_sub_u32 s43, s40, s43")
a("s_waitcnt lgkmcnt(0)")
def srd(d, lo, size):
    a(f"s_mov_b32 s{d}, s{lo}")
    a(f"s_and_b32 s{d+1}, s{lo+1}, 0xffff")
    a(f"s_mov_b32 s{d+2}, {size}")
    a(f"s_mov_b32 s{d+3}, 0x20000")
srd(16, 4, X_BYTES); srd(20, 6, W_BYTES); srd(24, 8, S_BYTES); srd(28, 10, S_BYTES); srd(32, 12, A_BYTES); srd(36, 14, O_BYTES)
a("v_and_b32 v1, 15, v0")
a("v_lshrrev_b32 v2, 4, v0")
a("s_mov_b32 s44, %d" % (8*18432))
a("v_mul_lo_u32 v3, v2, s44")
a("v_lshl_add_u32 v3, v1, 4, v3")
a("s_movk_i32 s44, 1152")
a("v_mul_lo_u32 v4, v1, s44")
a("v_lshl_add_u32 v4, v2, 4, v4")
a("v_lshlrev_b32 v5, 4, v2")
a("s_lshl_b32 s44, s43, 7")
a("v_lshlrev_b32 v6, 3, v1")
a("v_add_u32 v6, s44, v6")
a("buffer_load_dwordx2 v[8:9], v6, s[24:27], 0 offen")
a("buffer_load_dwordx2 v[10:11], v6, s[28:31], 0 offen")
a("s_mov_b32 s44, %d" % (4*9216))
a("v_mul_lo_u32 v7, v2, s44")
a("v_lshl_add_u32 v7, v1, 3, v7")
a("s_mul_i32 s45, s42, %d" % (64*9216))
a("s_lshl_b32 s44, s43, 7")
a("s_add_u32 s45, s45, s44")
a("s_lshl_b32 s46, s43, 8")
a("s_mul_i32 s47, s42, %d" % (64*1152))
a("s_mov_b32 s48, 0")
a("s_waitcnt vmcnt(0)")
for i in range(2):
    a(f"v_lshlrev_b32 v{12+2*i}, 16, v{8+i}")
    a(f"v_and_b32 v{13+2*i}, 0xffff0000, v{8+i}")
    a(f"v_lshlrev_b32 v{16+2*i}, 16, v{10+i}")
    a(f"v_and_b32 v{17+2*i}, 0xffff0000, v{10+i}")
ACC = 128
for i in range(64):
    a(f"v_mov_b32 v{ACC+i}, 0")
a("s_mov_b32 s49, 0")
a.label("L_k")
WR = 32
XR = 64
AR = 80
BF = 96
for i in range(8):
    a(f"buffer_load_dwordx4 v[{WR+4*i}:{WR+4*i+3}], v3, s[20:23], s46 offen")
    a("s_add_u32 s46, s46, 18432")
a("s_add_u32 s46, s46, %d" % (24*18432))
a("s_mov_b32 s50, s47")
for t in range(4):
    a(f"buffer_load_dwordx4 v[{XR+4*t}:{XR+4*t+3}], v4, s[16:19], s50 offen")
    a("s_add_u32 s50, s50, 18432")
a("s_add_u32 s47, s47, 64")
a(f"buffer_load_dwordx4 v[{AR}:{AR+3}], v5, s[32:35], s48 offen")
a("s_add_u32 s48, s48, 64")
a("s_waitcnt vmcnt(0)")
for i in range(4):
    a(f"v_lshlrev_b32 v{AR+4+2*i}, 16, v{AR+i}")
    a(f"v_and_b32 v{AR+5+2*i}, 0xffff0000, v{AR+i}")
for i in range(8):
    for c in range(4):
        r = WR+4*i+c
        a(f"v_cvt_f32_i32 v{r}, v{r}")
        a(f"v_sub_f32 v{r}, v{r}, v{16+c}")
        if mode == "faithful":
            a(f"v_mul_f32 v{r}, v{r}, v{12+c}")
        elif mode == "foldA":
            a(f"v_mul_f32 v{r}, v{r}, v{AR+4+i}")
        elif mode == "postS":
            pass
for c in range(4):
    for i in range(4):
        a(f"v_cvt_pk_bf16_f32 v{BF+4*c+i}, v{WR+8*i+c}, v{WR+8*i+4+c}")
if mode in ("faithful", "postS"):
    for t in range(4):
        for i in range(4):
            r = XR+4*t+i
            a(f"v_lshlrev_b32 v20, 16, v{r}")
            a(f"v_and_b32 v21, 0xffff0000, v{r}")
            a(f"v_mul_f32 v20, v20, v{AR+4+2*i}")
            a(f"v_mul_f32 v21, v21, v{AR+5+2*i}")
            a(f"v_cvt_pk_bf16_f32 v{r}, v20, v21")
a("s_nop 1")
for t in range(4):
    for c in range(4):
        d = ACC + 16*t + 4*c
        a(f"v_mfma_f32_16x16x32_bf16 v[{d}:{d+3}], v[{XR+4*t}:{XR+4*t+3}], v[{BF+4*c}:{BF+4*c+3}], v[{d}:{d+3}]")
a("s_add_u32 s49, s49, 1")
a("s_cmp_lt_u32 s49, 18")
a("s_cbranch_scc1 L_k")
a("s_nop 7")
a("s_nop 7")
for t in range(4):
    for r in range(4):
        regs = [ACC+16*t+4*c+r for c in range(4)]
        if mode in ("foldA", "postS"):
            for c in range(4):
                a(f"v_mul_f32 v{regs[c]}, v{regs[c]}, v{12+c}")
        d = 32 + 2*((t*4+r) % 8)
        a(f"v_cvt_pk_bf16_f32 v{d}, v{regs[0]}, v{regs[1]}")
        a(f"v_cvt_pk_bf16_f32 v{d+1}, v{regs[2]}, v{regs[3]}")
        a(f"s_add_u32 s50, s45, {(t*16+r)*9216}")
        a(f"buffer_store_dwordx2 v[{d}:{d+1}], v7, s[36:39], s50 offen")
a("s_waitcnt vmcnt(0)")
a.label("L_end")
open(out, "w").write(wrap(a.text(), (576,1,1), 256, 0, 192, 64, 192))
```

```python
import sys
from common import *

class Cnt:
    def __init__(self, a, name, maxv):
        self.a, self.name, self.maxv = a, name, maxv
        self.ops = []
    def issue(self, tag, optional=False):
        self.ops.append((tag, optional))
    def wait(self, tags):
        if isinstance(tags, (str, tuple)): tags = [tags]
        last = -1
        for i, (t, o) in enumerate(self.ops):
            if t in tags: last = i
        if last < 0: return
        n = sum(1 for (t, o) in self.ops[last+1:] if not o)
        n = min(n, self.maxv)
        self.a(f"s_waitcnt {self.name}({n})")
        self.ops = self.ops[last+1:]
    def wait_all(self):
        self.a(f"s_waitcnt {self.name}(0)")
        self.ops = []

def gen(out, opts):
    STAMP = opts.get("stamp", False)
    STFLAG = opts.get("stflag", "sc1")
    a = Asm()
    OUT_SLOTS = 13
    XBASE = OUT_SLOTS*4096
    SLOT = 18432
    NSLOT = 6
    LDS = XBASE + NSLOT*SLOT
    assert LDS == 163840
    slotaddr = lambda u: XBASE + (u % NSLOT)*SLOT
    p1_outslot = {0:4, 1:5, 2:6, 3:7, 4:0, 5:1, 6:2, 7:3, 8:8}
    if STAMP:
        a("s_memrealtime s[60:61]"); a("s_memtime s[62:63]")
    a("s_load_dwordx4 s[4:7], s[0:1], 0")
    a("s_load_dwordx4 s[8:11], s[0:1], 16")
    a("s_load_dwordx4 s[12:15], s[0:1], 32")
    if STAMP: a("s_load_dwordx2 s[56:57], s[0:1], 56")
    a("s_and_b32 s40, s2, 7")
    a("s_lshr_b32 s41, s2, 3")
    a("s_mul_i32 s42, s40, 63")
    a("s_lshr_b32 s43, s42, 1")
    a("s_add_u32 s42, s42, 63")
    a("s_lshr_b32 s42, s42, 1")
    a("s_add_u32 s43, s43, s41")
    a("s_cmp_ge_u32 s43, s42")
    a("s_cbranch_scc1 L_end")
    a("s_cmp_ge_u32 s2, 256")
    a("s_cbranch_scc1 L_end")
    a("s_mul_i32 s44, s43, 9363")
    a("s_lshr_b32 s44, s44, 16")
    a("s_mul_i32 s45, s44, 7")
    a("s_sub_u32 s45, s43, s45")
    a("v_lshrrev_b32 v1, 6, v0")
    a("v_and_b32 v0, 63, v0")
    a("s_mul_i32 s46, s45, %d" % (292*1152))
    a("v_readfirstlane_b32 s3, v1")
    a("s_lshl_b32 s47, s44, 9")
    a("s_mul_i32 s48, s45, %d" % (292*9216))
    a("s_lshl_b32 s49, s44, 8")
    a("s_add_u32 s48, s48, s49")
    a("s_cmp_ge_u32 s3, 4")
    a("s_cbranch_scc0 L_compute")

    a("s_sub_u32 s3, s3, 4")
    if opts.get("lprio"): a(f"s_setprio {opts['lprio']}")
    VW, VX, VA, VS, VWR0, VWR1, VOR, VOS = 2, 3, 4, 5, 6, 7, 8, 9
    a("v_and_b32 v10, 31, v0")
    a("v_lshrrev_b32 v11, 5, v0")
    a("s_lshl_b32 s50, s3, 1")
    a("v_add_u32 v12, s50, v11")
    a("s_mov_b32 s51, %d" % (8*18432))
    a(f"v_mul_lo_u32 v{VW}, v12, s51")
    a(f"v_lshl_add_u32 v{VW}, v10, 4, v{VW}")
    a("s_waitcnt lgkmcnt(0)")
    def srd(d, lo, off, size):
        if off is None:
            a(f"s_mov_b32 s{d}, s{lo}"); a(f"s_and_b32 s{d+1}, s{lo+1}, 0xffff"); a(f"s_mov_b32 s{d+2}, {size}")
        else:
            a(f"s_add_u32 s{d}, s{lo}, {off}"); a(f"s_addc_u32 s{d+1}, s{lo+1}, 0"); a(f"s_and_b32 s{d+1}, s{d+1}, 0xffff")
            a(f"s_sub_u32 s{d+2}, {size}, {off}")
        a(f"s_mov_b32 s{d+3}, 0x20000")
    srd(20, 6, "s47", W_BYTES)
    vm = Cnt(a, "vmcnt", 63)
    lg = Cnt(a, "lgkmcnt", 15)
    RAW = [32, 64, 96]
    APK = 128
    AF = 164
    SC = 172
    NZ = 176
    WO = 180
    ST = 196
    def w_load(kb, i):
        r = RAW[kb % 3] + 4*i
        a(f"s_mov_b32 s52, {(kb*64+i)*18432}")
        a(f"buffer_load_dwordx4 v[{r}:{r+3}], v{VW}, s[20:23], s52 offen")
        vm.issue(("W", kb))
    for i in range(8): w_load(0, i)
    srd(16, 4, "s46", X_BYTES)
    srd(24, 8, None, S_BYTES); srd(28, 10, None, S_BYTES); srd(32, 12, None, A_BYTES)
    srd(36, 14, "s48", O_BYTES)
    a("v_lshrrev_b32 v13, 3, v0")
    a("s_and_b32 s50, s3, 1"); a("s_lshl_b32 s50, s50, 2")
    a("v_lshrrev_b32 v14, 1, v13")
    a("v_add_u32 v14, s50, v14")
    a("v_and_b32 v15, 7, v0")
    a("v_xor_b32 v14, v14, v15")
    a("s_lshl_b32 s50, s3, 3")
    a("v_add_u32 v13, s50, v13")
    a("s_movk_i32 s51, 1152")
    a(f"v_mul_lo_u32 v{VX}, v13, s51")
    a(f"v_lshl_add_u32 v{VX}, v14, 4, v{VX}")
    a("s_lshl_b32 s53, s3, 10")
    a("s_lshl_b32 s50, s44, 8")
    a(f"v_lshlrev_b32 v{VS}, 3, v10")
    a(f"v_add_u32 v{VS}, s50, v{VS}")
    a(f"buffer_load_dwordx2 v[16:17], v{VS}, s[24:27], 0 offen"); vm.issue("C")
    a(f"buffer_load_dwordx2 v[18:19], v{VS}, s[28:31], 0 offen"); vm.issue("C")
    a(f"v_lshlrev_b32 v{VA}, 4, v12")
    a(f"buffer_load_dwordx4 v[{APK}:{APK+3}], v{VA}, s[32:35], 0 offen"); vm.issue("C")
    def x1_piece(kb, j):
        a(f"s_add_u32 m0, s53, {slotaddr(kb) + j*4096}")
        a(f"s_mov_b32 s52, {32*j*1152 + kb*128}")
        a(f"buffer_load_dwordx4 v{VX}, s[16:19], s52 offen lds")
        vm.issue(("X", kb))
    lab = [0]
    def x1_extra(kb):
        lab[0] += 1
        a("s_cmp_lg_u32 s3, 0"); a(f"s_cbranch_scc1 L_sk{lab[0]}")
        a(f"s_mov_b32 m0, {slotaddr(kb) + 16*1024}")
        a(f"s_mov_b32 s52, {288*1152 + kb*128}")
        a(f"buffer_load_dwordx4 v{VX}, s[16:19], s52 offen lds")
        a.label(f"L_sk{lab[0]}")
        vm.issue(("X", kb), optional=True)
    def x1_ops(kb):
        return [lambda j=j: x1_piece(kb, j) for j in range(4)] + [lambda: x1_extra(kb)]
    def pair_ops(m):
        ops = []
        def setup():
            a("s_cmp_ge_u32 s3, 2")
            a(f"s_cselect_b32 s54, {slotaddr(10+2*m)}, {slotaddr(9+2*m)}" if False else f"s_mov_b32 s54, {slotaddr(9+2*m)}")
            a(f"s_cselect_b32 s54, {slotaddr(10+2*m)}, s54")
            a("s_add_u32 s54, s54, s55")
        def piece(kb):
            if kb == 0: setup()
            a(f"s_add_u32 m0, s54, {kb*2048}")
            a(f"s_mov_b32 s52, {(16*(8+2*m))*1152 + kb*128}")
            a(f"buffer_load_dwordx4 v{VX}, s[16:19], s52 offen lds")
            vm.issue(("P", m))
        return [lambda kb=kb: piece(kb) for kb in range(9)]
    a("s_and_b32 s55, s3, 1"); a("s_lshl_b32 s55, s55, 10")
    for f in x1_ops(0): f()
    for kb in range(1, 9):
        a(f"buffer_load_dwordx4 v[{APK+4*kb}:{APK+4*kb+3}], v{VA}, s[32:35], 0 offen offset:{kb*128}"); vm.issue("C2")
    for i in range(8): w_load(1, i)
    for f in x1_ops(1): f()
    for i in range(8): w_load(2, i)
    for f in x1_ops(2): f()
    a("v_lshrrev_b32 v13, 3, v10"); a("v_lshlrev_b32 v13, 12, v13")
    a("v_and_b32 v14, 1, v10")
    a("v_lshl_add_u32 v13, v14, 10, v13")
    a("v_and_b32 v15, 6, v10")
    a("v_add_u32 v15, v15, v14")
    a("s_and_b32 s50, s3, 1"); a("s_lshl_b32 s50, s50, 1")
    a("v_add_u32 v20, s50, v11")
    a("v_lshl_add_u32 v15, v20, 4, v15")
    a("v_lshl_add_u32 v13, v15, 4, v13")
    a("s_lshr_b32 s50, s3, 1"); a("s_lshl_b32 s50, s50, 11")
    a(f"v_add_u32 v{VWR0}, s50, v13")
    a(f"v_xor_b32 v{VWR1}, 16, v{VWR0}")
    a("v_lshrrev_b32 v13, 4, v0"); a("s_lshl_b32 s50, s3, 2"); a("v_add_u32 v13, s50, v13")
    a("v_and_b32 v14, 15, v0")
    a("v_and_b32 v15, 7, v13"); a("v_xor_b32 v15, v15, v14")
    a(f"v_lshlrev_b32 v{VOR}, 8, v13"); a(f"v_lshl_add_u32 v{VOR}, v15, 4, v{VOR}")
    a("s_movk_i32 s51, 9216")
    a(f"v_mul_lo_u32 v{VOS}, v13, s51"); a(f"v_lshl_add_u32 v{VOS}, v14, 4, v{VOS}")
    vm.wait("C")
    for i in range(2):
        a(f"v_lshlrev_b32 v{SC+2*i}, 16, v{16+i}"); a(f"v_and_b32 v{SC+2*i+1}, 0xffff0000, v{16+i}")
        a(f"v_lshlrev_b32 v{NZ+2*i}, 16, v{18+i}"); a(f"v_and_b32 v{NZ+2*i+1}, 0xffff0000, v{18+i}")
    for e in range(4):
        a(f"v_mul_f32 v{NZ+e}, v{NZ+e}, v{SC+e}")
        a(f"v_sub_f32 v{NZ+e}, 0, v{NZ+e}")

    def convert(kb, fillers):
        R = RAW[kb % 3]
        steps = []
        def au():
            for i in range(4):
                a(f"v_lshlrev_b32 v{AF+2*i}, 16, v{APK+4*kb+i}"); a(f"v_and_b32 v{AF+2*i+1}, 0xffff0000, v{APK+4*kb+i}")
        steps.append(au)
        for m in range(4):
            def st(m=m):
                for i in (2*m, 2*m+1):
                    for e in range(4): a(f"v_cvt_f32_i32 v{R+4*i+e}, v{R+4*i+e}")
                for i in (2*m, 2*m+1):
                    for e in (0, 2):
                        r = R+4*i+e
                        a(f"v_pk_fma_f32 v[{r}:{r+1}], v[{r}:{r+1}], v[{SC+e}:{SC+e+1}], v[{NZ+e}:{NZ+e+1}]")
            def st2(m=m):
                for i in (2*m, 2*m+1):
                    sel = "op_sel:[0,0] op_sel_hi:[1,0]" if i % 2 == 0 else "op_sel:[0,1] op_sel_hi:[1,1]"
                    for e in (0, 2):
                        r = R+4*i+e
                        a(f"v_pk_mul_f32 v[{r}:{r+1}], v[{r}:{r+1}], v[{AF+2*m}:{AF+2*m+1}] {sel}")
                for e in range(4):
                    a(f"v_cvt_pk_bf16_f32 v{WO+4*e+m}, v{R+8*m+e}, v{R+8*m+4+e}")
            steps += [st, st2]
        def wr():
            for e in range(4):
                a(f"ds_write_b128 v{VWR1 if e & 1 else VWR0}, v[{WO+4*e}:{WO+4*e+3}] offset:{(kb&1)*16384 + (e>>1)*128}")
                lg.issue("w")
        steps.append(wr)
        vm.wait([("W", kb), "C2"] if kb == 1 else ("W", kb))
        if opts.get("fine") and kb == 5: lstamp(1)
        if opts.get("noconv"): steps = steps[-1:]
        nf, ns = len(fillers), len(steps)
        fi = 0
        for si, s in enumerate(steps):
            s()
            tgt = (si+1)*nf//ns if not opts.get("conv_first") else 0
            while fi < tgt:
                fillers[fi](); fi += 1
        while fi < nf:
            fillers[fi](); fi += 1
    stn = [0]
    def store_tiles(lst):
        regs = []
        for (slot, row0, half) in lst:
            r = ST + 4*(stn[0] % 12); stn[0] += 1
            regs.append(r)
            a(f"ds_read_b128 v[{r}:{r+3}], v{VOR} offset:{slot*4096}"); lg.issue(("o", r))
        for (slot, row0, half), r in zip(lst, regs):
            lg.wait(("o", r))
            if half:
                lab[0] += 1
                a("s_cmp_ge_u32 s3, 2"); a(f"s_cbranch_scc1 L_sk{lab[0]}")
            a(f"s_mov_b32 s52, {row0*9216}")
            a(f"buffer_store_dwordx4 v[{r}:{r+3}], v{VOS}, s[36:39], s52 offen {STFLAG}")
            if half: a.label(f"L_sk{lab[0]}")
            vm.issue("S", optional=half)
    def bar():
        lg.wait_all() if lg.ops else None
        a("s_barrier")
    def lstamp(i):
        if STAMP: a(f"s_memtime s[{64+2*i}:{65+2*i}]")
    if not opts.get("fine"): lstamp(0)
    convert(0, [])
    vm.wait(("X", 0))
    if not opts.get("fine"): lstamp(1)
    bar()
    for n in range(8):
        fill = []
        if n+3 <= 8:
            wl = [lambda i=i, kb=n+3: w_load(kb, i) for i in range(8)]
            fill = wl + x1_ops(n+3)
        elif n == 6: fill = pair_ops(0)
        elif n == 7: fill = pair_ops(1)
        save = opts.get("conv_first")
        if n >= 6: opts["conv_first"] = True
        if opts.get("fine") and n == 4: lstamp(0)
        convert(n+1, fill)
        opts["conv_first"] = save
        if opts.get("fine") and n == 4: lstamp(2)
        vm.wait(("X", n+1))
        if opts.get("fine"):
            if n == 4: lstamp(3)
        else:
            if n == 3: lstamp(2)
            if n == 7: lstamp(3)
        bar()
        if opts.get("fine") and n == 4: lstamp(4)
    vm.wait(("P", 0)); (lstamp(4) if not opts.get("fine") else None); bar()
    tile_row = lambda t: 16*t
    p2slot = lambda m, b: 9 + (2*m + b) % 4
    for f in pair_ops(2): f()
    store_tiles([(p1_outslot[t], 16*t, False) for t in range(4)] + [(8, 288, True)])
    vm.wait(("P", 1)); bar()
    for f in pair_ops(3): f()
    store_tiles([(p1_outslot[t], 16*t, False) for t in range(4, 8)] + [(p2slot(0, 0), 128, False)])
    vm.wait(("P", 2)); bar()
    for f in pair_ops(4): f()
    store_tiles([(p2slot(0, 1), 128+16, False), (p2slot(1, 0), 128+32, False)])
    vm.wait(("P", 3)); lstamp(5); bar()
    store_tiles([(p2slot(1, 1), 128+48, False), (p2slot(2, 0), 128+64, False)])
    vm.wait(("P", 4)); lstamp(6); bar()
    store_tiles([(p2slot(2, 1), 128+80, False), (p2slot(3, 0), 128+96, False)])
    bar()
    store_tiles([(p2slot(3, 1), 128+112, False), (p2slot(4, 0), 128+128, False)])
    bar()
    lstamp(7)
    store_tiles([(p2slot(4, 1), 128+144, False)])
    a("s_waitcnt vmcnt(0)")
    if STAMP:
        a("s_add_u32 s3, s3, 4")
        a("s_branch L_stamp")
    else:
        a("s_endpgm")

    a.label("L_compute")
    WP = 0
    WP = 112
    ACC = 40
    FR = 16
    NB = 6
    A0, A1, AC0, AC1, B0, B1, VO = 2, 3, 4, 5, 6, 7, 8
    a("v_and_b32 v10, 15, v0")
    a("v_lshrrev_b32 v11, 4, v0")
    a("v_lshrrev_b32 v12, 1, v10")
    a("v_xor_b32 v12, v12, v11")
    a(f"v_lshlrev_b32 v{A0}, 7, v10")
    a(f"v_lshl_add_u32 v{A0}, v12, 4, v{A0}")
    a(f"v_xor_b32 v{A1}, 64, v{A0}")
    a("v_and_b32 v12, 2, v10"); a("v_lshlrev_b32 v12, 2, v12")
    a("v_lshrrev_b32 v13, 2, v10"); a("v_lshl_add_u32 v12, v13, 1, v12")
    a("v_and_b32 v13, 1, v10"); a("v_add_u32 v12, v12, v13")
    a("v_lshl_add_u32 v12, v11, 4, v12")
    a("s_lshl_b32 s50, s3, 12")
    a(f"v_lshlrev_b32 v{B0}, 4, v12"); a(f"v_add_u32 v{B0}, s50, v{B0}")
    a(f"v_xor_b32 v{B1}, 16, v{B0}")
    a("s_lshl_b32 s50, s3, 2"); a("v_add_u32 v12, s50, v11")
    a("v_and_b32 v13, 7, v10"); a("v_xor_b32 v12, v12, v13")
    a(f"v_lshlrev_b32 v{VO}, 8, v10"); a(f"v_lshl_add_u32 v{VO}, v12, 4, v{VO}")
    a("s_waitcnt lgkmcnt(0)")
    lc = Cnt(a, "lgkmcnt", 15)
    wreg = lambda ks, c: WP + 8*ks + 4*c
    def mfma(acc, ks, c, fr, first):
        src = "0" if first else f"v[{acc+4*c}:{acc+4*c+3}]"
        a(f"v_mfma_f32_16x16x32_bf16 v[{acc+4*c}:{acc+4*c+3}], v[{wreg(ks,c)}:{wreg(ks,c)+3}], v[{fr}:{fr+3}], {src}")
    def epi_cvt(acc):
        for m in range(4): a(f"v_cvt_pk_bf16_f32 v{acc+m}, v{acc+2*m}, v{acc+2*m+1}")
    def epi_wr(acc, slot, half=False, areg=VO):
        if half: a("s_mov_b64 exec, s[70:71]" if not STAMP else "s_mov_b64 exec, s[90:91]")
        a(f"ds_write_b128 v{areg}, v[{acc}:{acc+3}] offset:{slot*4096}"); lc.issue("ow")
        if half: a("s_mov_b64 exec, -1")
    hm = 90 if STAMP else 70
    a(f"s_mov_b32 s{hm}, 0x00ff00ff"); a(f"s_mov_b32 s{hm+1}, 0x00ff00ff")
    def cstamp(i):
        if STAMP: a(f"s_memtime s[{64+2*i}:{65+2*i}]")
    def cbar():
        a("s_barrier")
    frn = [0]
    for kb in range(9):
        cbar()
        if kb == 0: cstamp(0)
        if kb == 4: cstamp(1)
        if kb == 8: cstamp(2)
        a(f"v_add_u32 v{AC0}, {slotaddr(kb)}, v{A0}"); a(f"v_add_u32 v{AC1}, {slotaddr(kb)}, v{A1}")
        for s in range(2):
            for c in range(2):
                r = wreg(2*kb+s, c)
                a(f"ds_read_b128 v[{r}:{r+3}], v{B1 if c else B0} offset:{(kb&1)*16384 + s*2048 + c*1024}"); lc.issue(("w", s))
        order = [8, 0, 1, 2, 3, 4, 5, 6, 7] if kb == 8 else list(range(9))
        jobs = [(t, s) for t in order for s in range(2)]
        def rd(j):
            t, s = jobs[j]
            fr = FR + 4*(frn[0] % NB); frn[0] += 1
            a(f"ds_read_b128 v[{fr}:{fr+3}], v{AC1 if s else AC0} offset:{t*2048}"); lc.issue(("a", kb, j))
            return fr
        frs = {}
        for j in range(NB-1): frs[j] = rd(j)
        pend = []
        hold = 3 if kb == 8 else 0
        for j in range(len(jobs) - hold):
            if j + NB-1 < len(jobs): frs[j+NB-1] = rd(j+NB-1)
            t, s = jobs[j]
            lc.wait([("a", kb, j), ("w", s)])
            if not (opts.get("nomfma1") and 0 < kb < 8):
                for c in range(2): mfma(ACC + 8*t, 2*kb+s, c, frs[j], kb == 0 and s == 0)
            if kb == 8:
                if j >= 5 and j % 2 == 1:
                    tt = jobs[j-4][0]
                    if tt in (8, 0, 1, 2, 3):
                        epi_cvt(ACC + 8*tt); epi_wr(ACC + 8*tt, p1_outslot[tt], half=(tt == 8))
        lc.wait_all()
        if kb == 8:
            held = [(jobs[j], frs[j]) for j in range(len(jobs)-hold, len(jobs))]
    XACC, YACC = ACC + 0, ACC + 8
    def pair_body(first_pair, loop):
        nonlocal held
        jobs = [(b, ks) for b in range(2) for ks in range(18)]
        frs = {}
        def rd(j):
            b, ks = jobs[j]
            fr = FR + 4*(frn[0] % NB); frn[0] += 1
            base = (AC1 if ks & 1 else AC0) if b == 0 else (13 if ks & 1 else 12)
            a(f"ds_read_b128 v[{fr}:{fr+3}], v{base} offset:{(ks>>1)*2048}"); lc.issue(("p", j))
            return fr
        a(f"v_add_u32 v{AC0}, s80, v{A0}"); a(f"v_add_u32 v{AC1}, s80, v{A1}")
        nxt = 0
        for _ in range(NB - len(held)): frs[nxt] = rd(nxt); nxt += 1
        a(f"v_add_u32 v12, s81, v{A0}"); a(f"v_add_u32 v13, s81, v{A1}")
        for (job, fr) in held:
            job(fr)
            frs[nxt] = rd(nxt); nxt += 1
        hold = 3
        extra = {}
        if first_pair:
            for n, tt in enumerate((4, 5, 6, 7)):
                extra[3 + 3*n] = (lambda tt=tt: (epi_cvt(ACC + 8*tt), epi_wr(ACC + 8*tt, p1_outslot[tt])))
        else:
            extra[3] = lambda: (epi_cvt(YACC), epi_wr(YACC, 0, areg=15))
        extra[21] = lambda: (epi_cvt(XACC), epi_wr(XACC, 0, areg=14))
        for j in range(36 - hold):
            b, ks = jobs[j]
            lc.wait(("p", j))
            for c in range(2): mfma(YACC if b else XACC, ks, c, frs[j], ks == 0)
            if nxt < 36: frs[nxt] = rd(nxt); nxt += 1
            if j in extra: extra[j]()
        lc.wait_all()
        held = [((lambda fr, ks=jobs[j][1]: [mfma(YACC, ks, c, fr, False) for c in range(2)]), frs[j]) for j in range(36-hold, 36)]
    held = [((lambda fr, t=t, s=s: [mfma(ACC + 8*t, 16+s, c, fr, False) for c in range(2)]), fr) for ((t, s), fr) in held]
    a(f"s_mov_b32 s80, {slotaddr(9)}"); a(f"s_mov_b32 s81, {slotaddr(10)}")
    a(f"v_add_u32 v14, {9*4096}, v{VO}")
    cbar()
    cstamp(3)
    pair_body(True, False)
    ph = frn[0] % NB
    a("s_mov_b32 s82, 1")
    a.label("L_p2")
    a(f"s_add_u32 s80, s80, {2*SLOT}"); a(f"s_cmp_ge_u32 s80, {LDS}"); a(f"s_cselect_b32 s83, {NSLOT*SLOT}, 0"); a("s_sub_u32 s80, s80, s83")
    a(f"s_add_u32 s81, s81, {2*SLOT}"); a(f"s_cmp_ge_u32 s81, {LDS}"); a(f"s_cselect_b32 s83, {NSLOT*SLOT}, 0"); a("s_sub_u32 s81, s81, s83")
    a("v_add_u32 v15, 4096, v14")
    a("s_and_b32 s83, s82, 1"); a("s_lshl_b32 s83, s83, 13"); a(f"s_add_u32 s83, s83, {9*4096}")
    a(f"v_add_u32 v14, s83, v{VO}")
    cbar()
    lc.ops = []
    pair_body(False, True)
    assert frn[0] % NB == ph
    a("s_add_u32 s82, s82, 1")
    a("s_cmp_lt_u32 s82, 5")
    a("s_cbranch_scc1 L_p2")
    a("v_add_u32 v15, 4096, v14")
    cbar()
    cstamp(4)
    for (job, fr) in held: job(fr)
    a("s_nop 7")
    epi_cvt(YACC); epi_wr(YACC, 0, areg=15)
    lc.wait_all()
    cbar()
    if STAMP:
        a.label("L_stamp")
        a("s_memrealtime s[58:59]"); a("s_memtime s[94:95]")
        a("s_getreg_b32 s96, hwreg(HW_REG_XCC_ID)"); a("s_getreg_b32 s97, hwreg(HW_REG_HW_ID)")
        a("s_waitcnt lgkmcnt(0)")
        a("s_mov_b32 s84, s56"); a("s_and_b32 s85, s57, 0xffff"); a("s_mov_b32 s86, 0x100000"); a("s_mov_b32 s87, 0x20000")
        a("s_lshl_b32 s98, s2, 3"); a("s_add_u32 s98, s98, s3"); a("s_lshl_b32 s98, s98, 6")
        vals = ["s60", "s58", "s62", "s94"] + [f"s{64+2*i}" for i in range(8)]
        vals += ["0", "0x5a5a1234", "s97", "s96"]
        a("v_mov_b32 v1, 0")
        for i, v in enumerate(vals):
            a(f"v_mov_b32 v2, {v}"); a(f"v_cmp_eq_u32 vcc, {i}, v0"); a("s_nop 1"); a("v_cndmask_b32 v1, v1, v2, vcc")
        a("v_lshlrev_b32 v2, 2, v0"); a("v_cmp_gt_u32 vcc, 16, v0"); a("s_and_saveexec_b64 s[100:101], vcc")
        a("buffer_store_dword v1, v2, s[84:87], s98 offen"); a("s_waitcnt vmcnt(0)")
    a.label("L_end")
    open(out, "w").write(wrap(a.text(), (256,1,1), 512, LDS, 256, 102, 256))

if __name__ == "__main__":
    gen("v1.s", {})
    gen("v1s.s", {"stamp": True})
    gen("v1a.s", {"stamp": True, "fine": True})
    gen("v1b.s", {"stamp": True, "fine": True, "noconv": True})
    gen("v1c.s", {"stamp": True, "fine": True, "lprio": 3})
    gen("v1d.s", {"stamp": True, "fine": True, "nomfma1": True})
    gen("v1e.s", {"stamp": True, "fine": True, "conv_first": True})
    gen("v1f.s", {"stamp": True, "fine": True, "conv_first": True, "lprio": 3})
```

```python
import sys
from common import *

class Cnt:
    def __init__(self, a, name, maxv):
        self.a, self.name, self.maxv = a, name, maxv
        self.ops = []
    def issue(self, tag, optional=False):
        self.ops.append((tag, optional))
    def wait(self, tags):
        if isinstance(tags, (str, tuple)): tags = [tags]
        last = -1
        for i, (t, o) in enumerate(self.ops):
            if t in tags: last = i
        if last < 0: return
        n = sum(1 for (t, o) in self.ops[last+1:] if not o)
        n = min(n, self.maxv)
        self.a(f"s_waitcnt {self.name}({n})")
        self.ops = self.ops[last+1:]
    def wait_all(self):
        self.a(f"s_waitcnt {self.name}(0)")
        self.ops = []

def gen(out, opts):
    STAMP = opts.get("stamp", False)
    STFLAG = opts.get("stflag", "sc1")
    a = Asm()
    OUT_SLOTS = 13
    XBASE = OUT_SLOTS*4096
    SLOT = 18432
    NSLOT = 6
    LDS = XBASE + NSLOT*SLOT
    assert LDS == 163840
    slotaddr = lambda u: XBASE + (u % NSLOT)*SLOT
    p1_outslot = {0:4, 1:5, 2:6, 3:7, 4:0, 5:1, 6:2, 7:3, 8:8}
    if STAMP:
        a("s_memrealtime s[60:61]"); a("s_memtime s[62:63]")
    a("s_load_dwordx4 s[4:7], s[0:1], 0")
    a("s_load_dwordx4 s[8:11], s[0:1], 16")
    a("s_load_dwordx4 s[12:15], s[0:1], 32")
    if STAMP: a("s_load_dwordx2 s[56:57], s[0:1], 56")
    a("s_and_b32 s40, s2, 7")
    a("s_lshr_b32 s41, s2, 3")
    a("s_mul_i32 s42, s40, 63")
    a("s_lshr_b32 s43, s42, 1")
    a("s_add_u32 s42, s42, 63")
    a("s_lshr_b32 s42, s42, 1")
    a("s_add_u32 s43, s43, s41")
    a("s_cmp_ge_u32 s43, s42")
    a("s_cbranch_scc1 L_end")
    a("s_cmp_ge_u32 s2, 256")
    a("s_cbranch_scc1 L_end")
    a("s_mul_i32 s44, s43, 9363")
    a("s_lshr_b32 s44, s44, 16")
    a("s_mul_i32 s45, s44, 7")
    a("s_sub_u32 s45, s43, s45")
    a("v_lshrrev_b32 v1, 6, v0")
    a("v_and_b32 v0, 63, v0")
    a("s_mul_i32 s46, s45, %d" % (292*1152))
    a("v_readfirstlane_b32 s3, v1")
    a("s_lshl_b32 s47, s44, 9")
    a("s_mul_i32 s48, s45, %d" % (292*9216))
    a("s_lshl_b32 s49, s44, 8")
    a("s_add_u32 s48, s48, s49")
    a("s_cmp_ge_u32 s3, 4")
    a("s_cbranch_scc0 L_compute")

    a("s_sub_u32 s3, s3, 4")
    if opts.get("lprio"): a(f"s_setprio {opts['lprio']}")
    VW, VX, VA, VS, VWR0, VWR1, VOR, VOS = 2, 3, 4, 5, 6, 7, 8, 9
    a("v_and_b32 v10, 31, v0")
    a("v_lshrrev_b32 v11, 5, v0")
    a("s_lshl_b32 s50, s3, 1")
    a("v_add_u32 v12, s50, v11")
    a("s_mov_b32 s51, %d" % (8*18432))
    a(f"v_mul_lo_u32 v{VW}, v12, s51")
    a(f"v_lshl_add_u32 v{VW}, v10, 4, v{VW}")
    a("s_waitcnt lgkmcnt(0)")
    def srd(d, lo, off, size):
        if off is None:
            a(f"s_mov_b32 s{d}, s{lo}"); a(f"s_and_b32 s{d+1}, s{lo+1}, 0xffff"); a(f"s_mov_b32 s{d+2}, {size}")
        else:
            a(f"s_add_u32 s{d}, s{lo}, {off}"); a(f"s_addc_u32 s{d+1}, s{lo+1}, 0"); a(f"s_and_b32 s{d+1}, s{d+1}, 0xffff")
            a(f"s_sub_u32 s{d+2}, {size}, {off}")
        a(f"s_mov_b32 s{d+3}, 0x20000")
    srd(20, 6, "s47", W_BYTES)
    vm = Cnt(a, "vmcnt", 63)
    lg = Cnt(a, "lgkmcnt", 15)
    RAW = [32, 64, 96]
    APK = 128
    AF = 164
    SC = 172
    NZ = 176
    WO = 180
    ST = 196
    def w_load(kb, i):
        r = RAW[kb % 3] + 4*i
        a(f"s_mov_b32 s52, {(kb*64+i)*18432}")
        a(f"buffer_load_dwordx4 v[{r}:{r+3}], v{VW}, s[20:23], s52 offen")
        vm.issue(("W", kb))
    for i in range(8): w_load(0, i)
    srd(16, 4, "s46", X_BYTES)
    srd(24, 8, None, S_BYTES); srd(28, 10, None, S_BYTES); srd(32, 12, None, A_BYTES)
    srd(36, 14, "s48", O_BYTES)
    a("v_lshrrev_b32 v13, 3, v0")
    a("s_and_b32 s50, s3, 1"); a("s_lshl_b32 s50, s50, 2")
    a("v_lshrrev_b32 v14, 1, v13")
    a("v_add_u32 v14, s50, v14")
    a("v_and_b32 v15, 7, v0")
    a("v_xor_b32 v14, v14, v15")
    a("s_lshl_b32 s50, s3, 3")
    a("v_add_u32 v13, s50, v13")
    a("s_movk_i32 s51, 1152")
    a(f"v_mul_lo_u32 v{VX}, v13, s51")
    a(f"v_lshl_add_u32 v{VX}, v14, 4, v{VX}")
    a("s_lshl_b32 s53, s3, 10")
    a("s_lshl_b32 s50, s44, 8")
    a(f"v_lshlrev_b32 v{VS}, 3, v10")
    a(f"v_add_u32 v{VS}, s50, v{VS}")
    a(f"buffer_load_dwordx2 v[16:17], v{VS}, s[24:27], 0 offen"); vm.issue("C")
    a(f"buffer_load_dwordx2 v[18:19], v{VS}, s[28:31], 0 offen"); vm.issue("C")
    a(f"v_lshlrev_b32 v{VA}, 4, v12")
    a(f"buffer_load_dwordx4 v[{APK}:{APK+3}], v{VA}, s[32:35], 0 offen"); vm.issue("C")
    def x1_piece(kb, j):
        a(f"s_add_u32 m0, s53, {slotaddr(kb) + j*4096}")
        a(f"s_mov_b32 s52, {32*j*1152 + kb*128}")
        a(f"buffer_load_dwordx4 v{VX}, s[16:19], s52 offen lds")
        vm.issue(("X", kb))
    lab = [0]
    def x1_extra(kb):
        lab[0] += 1
        a("s_cmp_lg_u32 s3, 0"); a(f"s_cbranch_scc1 L_sk{lab[0]}")
        a(f"s_mov_b32 m0, {slotaddr(kb) + 16*1024}")
        a(f"s_mov_b32 s52, {288*1152 + kb*128}")
        a(f"buffer_load_dwordx4 v{VX}, s[16:19], s52 offen lds")
        a.label(f"L_sk{lab[0]}")
        vm.issue(("X", kb), optional=True)
    def x1_ops(kb):
        return [lambda j=j: x1_piece(kb, j) for j in range(4)] + [lambda: x1_extra(kb)]
    def pair_ops(m):
        ops = []
        def setup():
            a("s_cmp_ge_u32 s3, 2")
            a(f"s_cselect_b32 s54, {slotaddr(10+2*m)}, {slotaddr(9+2*m)}" if False else f"s_mov_b32 s54, {slotaddr(9+2*m)}")
            a(f"s_cselect_b32 s54, {slotaddr(10+2*m)}, s54")
            a("s_add_u32 s54, s54, s55")
        def piece(kb):
            if opts.get("nop2load") and m >= 2: return
            if kb == 0: setup()
            a(f"s_add_u32 m0, s54, {kb*2048}")
            a(f"s_mov_b32 s52, {(16*(8+2*m))*1152 + kb*128}")
            a(f"buffer_load_dwordx4 v{VX}, s[16:19], s52 offen lds")
            vm.issue(("P", m))
        return [lambda kb=kb: piece(kb) for kb in range(9)]
    a("s_and_b32 s55, s3, 1"); a("s_lshl_b32 s55, s55, 10")
    for f in x1_ops(0): f()
    for kb in range(1, 9):
        a(f"buffer_load_dwordx4 v[{APK+4*kb}:{APK+4*kb+3}], v{VA}, s[32:35], 0 offen offset:{kb*128}"); vm.issue("C2")
    for i in range(8): w_load(1, i)
    for f in x1_ops(1): f()
    for i in range(8): w_load(2, i)
    for f in x1_ops(2): f()
    a("v_lshrrev_b32 v13, 3, v10"); a("v_lshlrev_b32 v13, 12, v13")
    a("v_and_b32 v14, 1, v10")
    a("v_lshl_add_u32 v13, v14, 10, v13")
    a("v_and_b32 v15, 6, v10")
    a("v_add_u32 v15, v15, v14")
    a("s_and_b32 s50, s3, 1"); a("s_lshl_b32 s50, s50, 1")
    a("v_add_u32 v20, s50, v11")
    a("v_lshl_add_u32 v15, v20, 4, v15")
    a("v_lshl_add_u32 v13, v15, 4, v13")
    a("s_lshr_b32 s50, s3, 1"); a("s_lshl_b32 s50, s50, 11")
    a(f"v_add_u32 v{VWR0}, s50, v13")
    a(f"v_xor_b32 v{VWR1}, 16, v{VWR0}")
    a("v_lshrrev_b32 v13, 4, v0"); a("s_lshl_b32 s50, s3, 2"); a("v_add_u32 v13, s50, v13")
    a("v_and_b32 v14, 15, v0")
    a("v_and_b32 v15, 7, v13"); a("v_xor_b32 v15, v15, v14")
    a(f"v_lshlrev_b32 v{VOR}, 8, v13"); a(f"v_lshl_add_u32 v{VOR}, v15, 4, v{VOR}")
    a("s_movk_i32 s51, 9216")
    a(f"v_mul_lo_u32 v{VOS}, v13, s51"); a(f"v_lshl_add_u32 v{VOS}, v14, 4, v{VOS}")
    vm.wait("C")
    for i in range(2):
        a(f"v_lshlrev_b32 v{SC+2*i}, 16, v{16+i}"); a(f"v_and_b32 v{SC+2*i+1}, 0xffff0000, v{16+i}")
        a(f"v_lshlrev_b32 v{NZ+2*i}, 16, v{18+i}"); a(f"v_and_b32 v{NZ+2*i+1}, 0xffff0000, v{18+i}")
    for e in range(4):
        a(f"v_mul_f32 v{NZ+e}, v{NZ+e}, v{SC+e}")
        a(f"v_sub_f32 v{NZ+e}, 0, v{NZ+e}")

    def convert(kb, fillers):
        R = RAW[kb % 3]
        steps = []
        def au():
            for i in range(4):
                a(f"v_lshlrev_b32 v{AF+2*i}, 16, v{APK+4*kb+i}"); a(f"v_and_b32 v{AF+2*i+1}, 0xffff0000, v{APK+4*kb+i}")
        steps.append(au)
        for m in range(4):
            def st(m=m):
                for i in (2*m, 2*m+1):
                    for e in range(4): a(f"v_cvt_f32_i32 v{R+4*i+e}, v{R+4*i+e}")
                for i in (2*m, 2*m+1):
                    for e in (0, 2):
                        r = R+4*i+e
                        a(f"v_pk_fma_f32 v[{r}:{r+1}], v[{r}:{r+1}], v[{SC+e}:{SC+e+1}], v[{NZ+e}:{NZ+e+1}]")
            def st2(m=m):
                for i in (2*m, 2*m+1):
                    sel = "op_sel:[0,0] op_sel_hi:[1,0]" if i % 2 == 0 else "op_sel:[0,1] op_sel_hi:[1,1]"
                    for e in (0, 2):
                        r = R+4*i+e
                        a(f"v_pk_mul_f32 v[{r}:{r+1}], v[{r}:{r+1}], v[{AF+2*m}:{AF+2*m+1}] {sel}")
                for e in range(4):
                    a(f"v_cvt_pk_bf16_f32 v{WO+4*e+m}, v{R+8*m+e}, v{R+8*m+4+e}")
            steps += [st, st2]
        def wr():
            for e in range(4):
                a(f"ds_write_b128 v{VWR1 if e & 1 else VWR0}, v[{WO+4*e}:{WO+4*e+3}] offset:{(kb&1)*16384 + (e>>1)*128}")
                lg.issue("w")
        steps.append(wr)
        vm.wait([("W", kb), "C2"] if kb == 1 else ("W", kb))
        if opts.get("fine") and kb == 5: lstamp(1)
        if opts.get("noconv"): steps = steps[-1:]
        nf, ns = len(fillers), len(steps)
        fi = 0
        for si, s in enumerate(steps):
            s()
            tgt = (si+1)*nf//ns if not opts.get("conv_first") else 0
            while fi < tgt:
                fillers[fi](); fi += 1
        while fi < nf:
            fillers[fi](); fi += 1
    stn = [0]
    def store_tiles(lst):
        regs = []
        if opts.get("nostore"): return
        for (slot, row0, half) in lst:
            r = ST + 4*(stn[0] % 12); stn[0] += 1
            regs.append(r)
            a(f"ds_read_b128 v[{r}:{r+3}], v{VOR} offset:{slot*4096}"); lg.issue(("o", r))
        for (slot, row0, half), r in zip(lst, regs):
            lg.wait(("o", r))
            if half:
                lab[0] += 1
                a("s_cmp_ge_u32 s3, 2"); a(f"s_cbranch_scc1 L_sk{lab[0]}")
            a(f"s_mov_b32 s52, {row0*9216}")
            a(f"buffer_store_dwordx4 v[{r}:{r+3}], v{VOS}, s[36:39], s52 offen {STFLAG}")
            if half: a.label(f"L_sk{lab[0]}")
            vm.issue("S", optional=half)
    def bar():
        lg.wait_all() if lg.ops else None
        a("s_barrier")
    def lstamp(i):
        if STAMP: a(f"s_memtime s[{64+2*i}:{65+2*i}]")
    if not opts.get("fine"): lstamp(0)
    convert(0, [])
    vm.wait(("X", 0))
    if not opts.get("fine"): lstamp(1)
    bar()
    for n in range(8):
        fill = []
        if n+3 <= 8:
            wl = [lambda i=i, kb=n+3: w_load(kb, i) for i in range(8)]
            fill = wl + x1_ops(n+3)
        elif n == 6: fill = pair_ops(0)
        elif n == 7: fill = pair_ops(1)
        save = opts.get("conv_first")
        if n >= 6: opts["conv_first"] = True
        if opts.get("fine") and n == 4: lstamp(0)
        convert(n+1, fill)
        opts["conv_first"] = save
        if opts.get("fine") and n == 4: lstamp(2)
        vm.wait(("X", n+1))
        if opts.get("fine"):
            if n == 4: lstamp(3)
        else:
            if n == 3: lstamp(2)
            if n == 7: lstamp(3)
        bar()
        if opts.get("fine") and n == 4: lstamp(4)
    vm.wait(("P", 0)); (lstamp(4) if not opts.get("fine") else None); bar()
    tile_row = lambda t: 16*t
    p2slot = lambda m, b: 9 + (2*m + b) % 4
    for f in pair_ops(2): f()
    store_tiles([(p1_outslot[t], 16*t, False) for t in range(4)] + [(8, 288, True)])
    vm.wait(("P", 1)); bar()
    for f in pair_ops(3): f()
    store_tiles([(p1_outslot[t], 16*t, False) for t in range(4, 8)] + [(p2slot(0, 0), 128, False)])
    vm.wait(("P", 2)); bar()
    for f in pair_ops(4): f()
    store_tiles([(p2slot(0, 1), 128+16, False), (p2slot(1, 0), 128+32, False)])
    vm.wait(("P", 3)); lstamp(5); bar()
    store_tiles([(p2slot(1, 1), 128+48, False), (p2slot(2, 0), 128+64, False)])
    vm.wait(("P", 4)); lstamp(6); bar()
    store_tiles([(p2slot(2, 1), 128+80, False), (p2slot(3, 0), 128+96, False)])
    bar()
    store_tiles([(p2slot(3, 1), 128+112, False), (p2slot(4, 0), 128+128, False)])
    bar()
    lstamp(7)
    store_tiles([(p2slot(4, 1), 128+144, False)])
    a("s_waitcnt vmcnt(0)")
    if STAMP:
        a("s_add_u32 s3, s3, 4")
        a("s_branch L_stamp")
    else:
        a("s_endpgm")

    a.label("L_compute")
    WP = 0
    WP = 112
    ACC = 40
    FR = 16
    NB = 6
    A0, A1, AC0, AC1, B0, B1, VO = 2, 3, 4, 5, 6, 7, 8
    a("v_and_b32 v10, 15, v0")
    a("v_lshrrev_b32 v11, 4, v0")
    a("v_lshrrev_b32 v12, 1, v10")
    a("v_xor_b32 v12, v12, v11")
    a(f"v_lshlrev_b32 v{A0}, 7, v10")
    a(f"v_lshl_add_u32 v{A0}, v12, 4, v{A0}")
    a(f"v_xor_b32 v{A1}, 64, v{A0}")
    a("v_and_b32 v12, 2, v10"); a("v_lshlrev_b32 v12, 2, v12")
    a("v_lshrrev_b32 v13, 2, v10"); a("v_lshl_add_u32 v12, v13, 1, v12")
    a("v_and_b32 v13, 1, v10"); a("v_add_u32 v12, v12, v13")
    a("v_lshl_add_u32 v12, v11, 4, v12")
    a("s_lshl_b32 s50, s3, 12")
    a(f"v_lshlrev_b32 v{B0}, 4, v12"); a(f"v_add_u32 v{B0}, s50, v{B0}")
    a(f"v_xor_b32 v{B1}, 16, v{B0}")
    a("s_lshl_b32 s50, s3, 2"); a("v_add_u32 v12, s50, v11")
    a("v_and_b32 v13, 7, v10"); a("v_xor_b32 v12, v12, v13")
    a(f"v_lshlrev_b32 v{VO}, 8, v10"); a(f"v_lshl_add_u32 v{VO}, v12, 4, v{VO}")
    a("s_waitcnt lgkmcnt(0)")
    lc = Cnt(a, "lgkmcnt", 15)
    wreg = lambda ks, c: WP + 8*ks + 4*c
    def mfma(acc, ks, c, fr, first):
        src = "0" if first else f"v[{acc+4*c}:{acc+4*c+3}]"
        a(f"v_mfma_f32_16x16x32_bf16 v[{acc+4*c}:{acc+4*c+3}], v[{wreg(ks,c)}:{wreg(ks,c)+3}], v[{fr}:{fr+3}], {src}")
    def epi_cvt(acc):
        for m in range(4): a(f"v_cvt_pk_bf16_f32 v{acc+m}, v{acc+2*m}, v{acc+2*m+1}")
    def epi_wr(acc, slot, half=False, areg=VO):
        if half: a("s_mov_b64 exec, s[70:71]" if not STAMP else "s_mov_b64 exec, s[90:91]")
        a(f"ds_write_b128 v{areg}, v[{acc}:{acc+3}] offset:{slot*4096}"); lc.issue("ow")
        if half: a("s_mov_b64 exec, -1")
    hm = 90 if STAMP else 70
    a(f"s_mov_b32 s{hm}, 0x00ff00ff"); a(f"s_mov_b32 s{hm+1}, 0x00ff00ff")
    def cstamp(i):
        if STAMP: a(f"s_memtime s[{64+2*i}:{65+2*i}]")
    def cbar():
        a("s_barrier")
    frn = [0]
    for kb in range(9):
        cbar()
        if kb == 0: cstamp(0)
        if kb == 4: cstamp(1)
        if kb == 8: cstamp(2)
        a(f"v_add_u32 v{AC0}, {slotaddr(kb)}, v{A0}"); a(f"v_add_u32 v{AC1}, {slotaddr(kb)}, v{A1}")
        for s in range(2):
            for c in range(2):
                r = wreg(2*kb+s, c)
                a(f"ds_read_b128 v[{r}:{r+3}], v{B1 if c else B0} offset:{(kb&1)*16384 + s*2048 + c*1024}"); lc.issue(("w", s))
        order = [8, 0, 1, 2, 3, 4, 5, 6, 7] if kb == 8 else list(range(9))
        jobs = [(t, s) for t in order for s in range(2)]
        def rd(j):
            t, s = jobs[j]
            fr = FR + 4*(frn[0] % NB); frn[0] += 1
            a(f"ds_read_b128 v[{fr}:{fr+3}], v{AC1 if s else AC0} offset:{t*2048}"); lc.issue(("a", kb, j))
            return fr
        frs = {}
        for j in range(NB-1): frs[j] = rd(j)
        pend = []
        hold = 3 if kb == 8 else 0
        for j in range(len(jobs) - hold):
            if j + NB-1 < len(jobs): frs[j+NB-1] = rd(j+NB-1)
            t, s = jobs[j]
            lc.wait([("a", kb, j), ("w", s)])
            if not (opts.get("nomfma1") and 0 < kb < 8):
                for c in range(2): mfma(ACC + 8*t, 2*kb+s, c, frs[j], kb == 0 and s == 0)
            if kb == 8:
                if j >= 5 and j % 2 == 1:
                    tt = jobs[j-4][0]
                    if tt in (8, 0, 1, 2, 3):
                        epi_cvt(ACC + 8*tt); epi_wr(ACC + 8*tt, p1_outslot[tt], half=(tt == 8))
        lc.wait_all()
        if kb == 8:
            held = [(jobs[j], frs[j]) for j in range(len(jobs)-hold, len(jobs))]
    XACC, YACC = ACC + 0, ACC + 8
    def pair_body(first_pair, loop):
        nonlocal held
        jobs = [(b, ks) for b in range(2) for ks in range(18)]
        frs = {}
        def rd(j):
            b, ks = jobs[j]
            fr = FR + 4*(frn[0] % NB); frn[0] += 1
            base = (AC1 if ks & 1 else AC0) if b == 0 else (13 if ks & 1 else 12)
            a(f"ds_read_b128 v[{fr}:{fr+3}], v{base} offset:{(ks>>1)*2048}"); lc.issue(("p", j))
            return fr
        a(f"v_add_u32 v{AC0}, s80, v{A0}"); a(f"v_add_u32 v{AC1}, s80, v{A1}")
        nxt = 0
        for _ in range(NB - len(held)): frs[nxt] = rd(nxt); nxt += 1
        a(f"v_add_u32 v12, s81, v{A0}"); a(f"v_add_u32 v13, s81, v{A1}")
        for (job, fr) in held:
            job(fr)
            frs[nxt] = rd(nxt); nxt += 1
        hold = 3
        extra = {}
        if first_pair:
            for n, tt in enumerate((4, 5, 6, 7)):
                extra[3 + 3*n] = (lambda tt=tt: (epi_cvt(ACC + 8*tt), epi_wr(ACC + 8*tt, p1_outslot[tt])))
        else:
            extra[3] = lambda: (epi_cvt(YACC), epi_wr(YACC, 0, areg=15))
        extra[21] = lambda: (epi_cvt(XACC), epi_wr(XACC, 0, areg=14))
        for j in range(36 - hold):
            b, ks = jobs[j]
            if not (opts.get("halfwait") and j % 2 == 1): lc.wait(("p", j+1 if opts.get("halfwait") else j))
            for c in range(2): mfma(YACC if b else XACC, ks, c, frs[j], ks == 0)
            if nxt < 36: frs[nxt] = rd(nxt); nxt += 1
            if j in extra and not opts.get("noepi"): extra[j]()
        lc.wait_all()
        held = [((lambda fr, ks=jobs[j][1]: [mfma(YACC, ks, c, fr, False) for c in range(2)]), frs[j]) for j in range(36-hold, 36)]
    held = [((lambda fr, t=t, s=s: [mfma(ACC + 8*t, 16+s, c, fr, False) for c in range(2)]), fr) for ((t, s), fr) in held]
    a(f"s_mov_b32 s80, {slotaddr(9)}"); a(f"s_mov_b32 s81, {slotaddr(10)}")
    a(f"v_add_u32 v14, {9*4096}, v{VO}")
    cbar()
    cstamp(3)
    pair_body(True, False)
    ph = frn[0] % NB
    a("s_mov_b32 s82, 1")
    a.label("L_p2")
    a(f"s_add_u32 s80, s80, {2*SLOT}"); a(f"s_cmp_ge_u32 s80, {LDS}"); a(f"s_cselect_b32 s83, {NSLOT*SLOT}, 0"); a("s_sub_u32 s80, s80, s83")
    a(f"s_add_u32 s81, s81, {2*SLOT}"); a(f"s_cmp_ge_u32 s81, {LDS}"); a(f"s_cselect_b32 s83, {NSLOT*SLOT}, 0"); a("s_sub_u32 s81, s81, s83")
    a("v_add_u32 v15, 4096, v14")
    a("s_and_b32 s83, s82, 1"); a("s_lshl_b32 s83, s83, 13"); a(f"s_add_u32 s83, s83, {9*4096}")
    a(f"v_add_u32 v14, s83, v{VO}")
    cbar()
    lc.ops = []
    pair_body(False, True)
    assert frn[0] % NB == ph
    a("s_add_u32 s82, s82, 1")
    a("s_cmp_lt_u32 s82, 5")
    a("s_cbranch_scc1 L_p2")
    a("v_add_u32 v15, 4096, v14")
    cbar()
    cstamp(4)
    for (job, fr) in held: job(fr)
    a("s_nop 7")
    epi_cvt(YACC); epi_wr(YACC, 0, areg=15)
    lc.wait_all()
    cbar()
    if STAMP:
        a.label("L_stamp")
        a("s_memrealtime s[58:59]"); a("s_memtime s[94:95]")
        a("s_getreg_b32 s96, hwreg(HW_REG_XCC_ID)"); a("s_getreg_b32 s97, hwreg(HW_REG_HW_ID)")
        a("s_waitcnt lgkmcnt(0)")
        a("s_mov_b32 s84, s56"); a("s_and_b32 s85, s57, 0xffff"); a("s_mov_b32 s86, 0x100000"); a("s_mov_b32 s87, 0x20000")
        a("s_lshl_b32 s98, s2, 3"); a("s_add_u32 s98, s98, s3"); a("s_lshl_b32 s98, s98, 6")
        vals = ["s60", "s58", "s62", "s94"] + [f"s{64+2*i}" for i in range(8)]
        vals += ["0", "0x5a5a1234", "s97", "s96"]
        a("v_mov_b32 v1, 0")
        for i, v in enumerate(vals):
            a(f"v_mov_b32 v2, {v}"); a(f"v_cmp_eq_u32 vcc, {i}, v0"); a("s_nop 1"); a("v_cndmask_b32 v1, v1, v2, vcc")
        a("v_lshlrev_b32 v2, 2, v0"); a("v_cmp_gt_u32 vcc, 16, v0"); a("s_and_saveexec_b64 s[100:101], vcc")
        a("buffer_store_dword v1, v2, s[84:87], s98 offen"); a("s_waitcnt vmcnt(0)")
    a.label("L_end")
    open(out, "w").write(wrap(a.text(), (256,1,1), 512, LDS, 256, 102, 256))

if __name__ == "__main__":
    gen("v1.s", {})
    gen("v1s.s", {"stamp": True})
    gen("v1a.s", {"stamp": True, "nop2load": True})
    gen("v1b.s", {"stamp": True, "nostore": True})
    gen("v1c.s", {"stamp": True, "nostore": True, "nop2load": True})
    gen("v1d.s", {"stamp": True, "nostore": True, "nop2load": True, "noepi": True})
    gen("v1e.s", {"stamp": True, "halfwait": True})
    gen("v1f.s", {"stamp": True, "stflag": ""})
```

```python
import sys
from common import *
from gen_v1 import Cnt

def gen(out, opts):
    STAMP = opts.get("stamp", False)
    STFLAG = opts.get("stflag", "sc1")
    DEN = opts.get("den", True)
    FINE = opts.get("fine", False)
    MT = "s_memrealtime" if opts.get("rt") else "s_memtime"
    a = Asm()
    F = 10
    NP = 4
    XBASE = 12*4096
    S1 = 21504
    slot1 = lambda u: XBASE + (u % 3)*S1
    PSTR = 38912
    pslot = lambda m: XBASE + ((m+2) % 3)*PSTR
    LDS = 163840
    assert XBASE + 2*PSTR + 36864 == LDS
    early = [F, 0, 1, 2, 3, 4, 5]
    late = [6, 7, 8, 9]
    p1_out = {0:4, 1:5, 2:6, 3:7, 4:9, 5:10, F:11, 6:0, 7:1, 8:2, 9:3}
    p2slot = lambda m, b: 8 + (2*m + b) % 4
    ATAB = 8*4096
    if STAMP:
        a("s_memrealtime s[60:61]"); a(f"{MT} s[62:63]")
    a("s_load_dwordx4 s[4:7], s[0:1], 0")
    a("s_load_dwordx4 s[8:11], s[0:1], 16")
    a("s_load_dwordx4 s[12:15], s[0:1], 32")
    if STAMP: a("s_load_dwordx2 s[56:57], s[0:1], 56")
    a("s_and_b32 s40, s2, 7")
    a("s_lshr_b32 s41, s2, 3")
    a("s_mul_i32 s42, s40, 63")
    a("s_lshr_b32 s43, s42, 1")
    a("s_add_u32 s42, s42, 63")
    a("s_lshr_b32 s42, s42, 1")
    a("s_add_u32 s43, s43, s41")
    a("s_cmp_ge_u32 s43, s42")
    a("s_cbranch_scc1 L_end")
    a("s_mul_i32 s44, s43, 9363")
    a("s_lshr_b32 s44, s44, 16")
    a("s_mul_i32 s45, s44, 7")
    a("s_sub_u32 s45, s43, s45")
    a("v_lshrrev_b32 v1, 6, v0")
    a("v_and_b32 v0, 63, v0")
    a("s_mul_i32 s46, s45, %d" % (292*1152))
    a("v_readfirstlane_b32 s3, v1")
    a("s_lshl_b32 s47, s44, 9")
    a("s_mul_i32 s48, s45, %d" % (292*9216))
    a("s_lshl_b32 s49, s44, 8")
    a("s_add_u32 s48, s48, s49")
    a("s_cmp_ge_u32 s3, 4")
    a("s_cbranch_scc0 L_compute")
    def srd(d, lo, off, size):
        if off is None:
            a(f"s_mov_b32 s{d}, s{lo}"); a(f"s_and_b32 s{d+1}, s{lo+1}, 0xffff"); a(f"s_mov_b32 s{d+2}, {size}")
        else:
            a(f"s_add_u32 s{d}, s{lo}, {off}"); a(f"s_addc_u32 s{d+1}, s{lo+1}, 0"); a(f"s_and_b32 s{d+1}, s{d+1}, 0xffff")
            a(f"s_sub_u32 s{d+2}, {size}, {off}")
        a(f"s_mov_b32 s{d+3}, 0x20000")

    a("s_sub_u32 s3, s3, 4")
    if opts.get("lprio"): a(f"s_setprio {opts['lprio']}")
    if DEN: a("s_setreg_imm32_b32 hwreg(HW_REG_MODE, 4, 2), 3")
    VW, VX, VA, VS, VWR0, VWR1, VOR, VOS, VAR = 2, 3, 4, 5, 6, 7, 8, 9, 21
    a("v_and_b32 v10, 31, v0")
    a("v_lshrrev_b32 v11, 5, v0")
    a("s_lshl_b32 s50, s3, 1")
    a("v_add_u32 v12, s50, v11")
    a("s_mov_b32 s51, %d" % (8*18432))
    a(f"v_mul_lo_u32 v{VW}, v12, s51")
    a(f"v_lshl_add_u32 v{VW}, v10, 4, v{VW}")
    a("v_lshrrev_b32 v13, 3, v0")
    a("s_and_b32 s50, s3, 1"); a("s_lshl_b32 s50, s50, 2")
    a("v_lshrrev_b32 v14, 1, v13")
    a("v_add_u32 v14, s50, v14")
    a("v_and_b32 v15, 7, v0")
    a("v_xor_b32 v14, v14, v15")
    a("s_lshl_b32 s50, s3, 3")
    a("v_add_u32 v13, s50, v13")
    a("s_movk_i32 s51, 1152")
    a(f"v_mul_lo_u32 v{VX}, v13, s51")
    a(f"v_lshl_add_u32 v{VX}, v14, 4, v{VX}")
    a("s_lshl_b32 s53, s3, 10")
    a("s_and_b32 s55, s3, 1"); a("s_lshl_b32 s55, s55, 10")
    a("s_lshr_b32 s50, s3, 1"); a("s_mul_i32 s50, s50, 18432"); a("s_add_u32 s55, s55, s50")
    a("s_lshl_b32 s50, s44, 8")
    a(f"v_lshlrev_b32 v{VS}, 3, v10"); a(f"v_add_u32 v{VS}, s50, v{VS}")
    a("v_lshrrev_b32 v13, 1, v0"); a("v_and_b32 v14, 1, v0")
    a(f"v_lshlrev_b32 v{VA}, 7, v13"); a(f"v_lshl_add_u32 v{VA}, v14, 4, v{VA}")
    a("s_lshl_b32 s50, s3, 5"); a(f"v_add_u32 v{VA}, s50, v{VA}")
    a("s_waitcnt lgkmcnt(0)")
    srd(20, 6, "s47", W_BYTES)
    vm = Cnt(a, "vmcnt", 63)
    lg = Cnt(a, "lgkmcnt", 15)
    RAW = [32, 64]
    AF = [128, 136]
    SC = 144; NZ = 148
    WO = 152
    ST = 168
    def w_load(kb, i):
        r = RAW[kb % 2] + 4*i
        a(f"s_mov_b32 s52, {(kb*64+i)*18432}")
        a(f"buffer_load_dwordx4 v[{r}:{r+3}], v{VW}, s[20:23], s52 offen")
        vm.issue(("W", kb))
    for i in range(8): w_load(0, i)
    srd(24, 8, None, S_BYTES); srd(28, 10, None, S_BYTES); srd(32, 12, None, A_BYTES)
    a(f"buffer_load_dwordx2 v[16:17], v{VS}, s[24:27], 0 offen"); vm.issue("C")
    a(f"buffer_load_dwordx2 v[18:19], v{VS}, s[28:31], 0 offen"); vm.issue("C")
    a(f"buffer_load_dwordx4 v[24:27], v{VA}, s[32:35], 0 offen"); vm.issue("C")
    srd(16, 4, "s46", X_BYTES)
    lab = [0]
    def x1_piece(kb, j):
        a(f"s_add_u32 m0, s53, {slot1(kb) + j*4096}")
        a(f"s_mov_b32 s52, {32*j*1152 + kb*128}")
        a(f"buffer_load_dwordx4 v{VX}, s[16:19], s52 offen lds")
        vm.issue(("X", kb))
    def x1_extra(kb):
        lab[0] += 1
        a("s_cmp_lg_u32 s3, 0"); a(f"s_cbranch_scc1 L_sk{lab[0]}")
        a(f"s_mov_b32 m0, {slot1(kb) + F*2048}")
        a(f"s_mov_b32 s52, {288*1152 + kb*128}")
        a(f"buffer_load_dwordx4 v{VX}, s[16:19], s52 offen lds")
        a.label(f"L_sk{lab[0]}")
        vm.issue(("X", kb), optional=True)
    def x1_ops(kb):
        return [lambda j=j: x1_piece(kb, j) for j in range(F//2)] + [lambda: x1_extra(kb)]
    def w_ops(kb):
        return [lambda i=i: w_load(kb, i) for i in range(8)]
    def pair_ops(m):
        def piece(kb):
            a(f"s_add_u32 m0, s55, {pslot(m) + kb*2048}")
            a(f"s_mov_b32 s52, {(16*(F+2*m))*1152 + kb*128}")
            a(f"buffer_load_dwordx4 v{VX}, s[16:19], s52 offen lds")
            vm.issue(("P", m))
        return [lambda kb=kb: piece(kb) for kb in range(9)]
    PRE = opts.get("pre", 4)
    for f in x1_ops(0): f()
    for f in w_ops(1)[:PRE]: f()
    srd(36, 14, "s48", O_BYTES)
    a("v_lshrrev_b32 v13, 3, v10"); a("v_lshlrev_b32 v13, 12, v13")
    a("v_and_b32 v14, 1, v10")
    a("v_lshl_add_u32 v13, v14, 10, v13")
    a("v_and_b32 v15, 6, v10")
    a("v_add_u32 v15, v15, v14")
    a("s_and_b32 s50, s3, 1"); a("s_lshl_b32 s50, s50, 1")
    a("v_add_u32 v20, s50, v11")
    a("v_lshl_add_u32 v15, v20, 4, v15")
    a("v_lshl_add_u32 v13, v15, 4, v13")
    a("s_lshr_b32 s50, s3, 1"); a("s_lshl_b32 s50, s50, 11")
    a(f"v_add_u32 v{VWR0}, s50, v13")
    a(f"v_xor_b32 v{VWR1}, 16, v{VWR0}")
    a("v_lshrrev_b32 v13, 4, v0"); a("s_lshl_b32 s50, s3, 2"); a("v_add_u32 v13, s50, v13")
    a("v_and_b32 v14, 15, v0")
    a("v_and_b32 v15, 7, v13"); a("v_xor_b32 v15, v15, v14")
    a(f"v_lshlrev_b32 v{VOR}, 8, v13"); a(f"v_lshl_add_u32 v{VOR}, v15, 4, v{VOR}")
    a("s_movk_i32 s51, 9216")
    a(f"v_mul_lo_u32 v{VOS}, v13, s51"); a(f"v_lshl_add_u32 v{VOS}, v14, 4, v{VOS}")
    a(f"s_add_u32 s50, s53, {ATAB}")
    a("v_min_u32 v22, 31, v0"); a("v_lshlrev_b32 v22, 5, v22"); a("v_add_u32 v22, s50, v22")
    a(f"v_lshlrev_b32 v{VAR}, 5, v11"); a(f"v_add_u32 v{VAR}, s50, v{VAR}")
    vm.wait("C")
    for i in range(4):
        a(f"v_lshlrev_b32 v{AF[0]+2*i}, 16, v{24+i}"); a(f"v_and_b32 v{AF[0]+2*i+1}, 0xffff0000, v{24+i}")
    if DEN:
        a("s_mov_b32 s50, 0x58000000")
        for i in range(8): a(f"v_mul_f32 v{AF[0]+i}, s50, v{AF[0]+i}")
    a(f"ds_write_b128 v22, v[{AF[0]}:{AF[0]+3}]"); a(f"ds_write_b128 v22, v[{AF[0]+4}:{AF[0]+7}] offset:16")
    for i in range(2):
        a(f"v_lshlrev_b32 v{SC+2*i}, 16, v{16+i}"); a(f"v_and_b32 v{SC+2*i+1}, 0xffff0000, v{16+i}")
        a(f"v_lshlrev_b32 v{NZ+2*i}, 16, v{18+i}"); a(f"v_and_b32 v{NZ+2*i+1}, 0xffff0000, v{18+i}")
    a("s_mov_b32 s50, 0x%08x" % (0xa7000000 if DEN else 0xbf800000))
    a("s_mov_b32 s51, 0x71800000")
    for e in range(4):
        a(f"v_mul_f32 v{NZ+e}, v{NZ+e}, v{SC+e}")
        a(f"v_mul_f32 v{NZ+e}, s50, v{NZ+e}")
        if DEN: a(f"v_mul_f32 v{SC+e}, s51, v{SC+e}")
    a("s_waitcnt lgkmcnt(0)")
    def a_read(kb):
        r = AF[kb & 1]
        a(f"ds_read_b128 v[{r}:{r+3}], v{VAR} offset:{kb*64}"); a(f"ds_read_b128 v[{r+4}:{r+7}], v{VAR} offset:{kb*64+16}")
        lg.issue("a"); lg.issue("a")
    a_read(0)
    def convert(kb, fillers, conv_first=False):
        R = RAW[kb % 2]; A = AF[kb & 1]
        steps = []
        for m in range(4):
            def st(m=m):
                for i in (2*m, 2*m+1):
                    if not DEN:
                        for e in range(4): a(f"v_cvt_f32_i32 v{R+4*i+e}, v{R+4*i+e}")
                    for e in (0, 2):
                        r = R+4*i+e
                        if (not opts.get("pk")):
                            for d in range(2): a(f"v_fma_f32 v{r+d}, v{r+d}, v{SC+e+d}, v{NZ+e+d}")
                        else:
                            a(f"v_pk_fma_f32 v[{r}:{r+1}], v[{r}:{r+1}], v[{SC+e}:{SC+e+1}], v[{NZ+e}:{NZ+e+1}]")
            def st2(m=m):
                for i in (2*m, 2*m+1):
                    sel = "op_sel:[0,0] op_sel_hi:[1,0]" if i % 2 == 0 else "op_sel:[0,1] op_sel_hi:[1,1]"
                    for e in (0, 2):
                        r = R+4*i+e
                        if (not opts.get("pk")):
                            for d in range(2): a(f"v_mul_f32 v{r+d}, v{r+d}, v{A+i}")
                        else:
                            a(f"v_pk_mul_f32 v[{r}:{r+1}], v[{r}:{r+1}], v[{A+2*m}:{A+2*m+1}] {sel}")
            def st3(m=m):
                for e in range(4):
                    a(f"v_cvt_pk_bf16_f32 v{WO+4*e+m}, v{R+8*m+e}, v{R+8*m+4+e}")
            steps += [st, st2, st3]
        def wr():
            for e in range(4):
                a(f"ds_write_b128 v{VWR1 if e & 1 else VWR0}, v[{WO+4*e}:{WO+4*e+3}] offset:{(kb&1)*16384 + (e>>1)*128}")
                lg.issue("w")
            if kb < 8: a_read(kb+1)
        steps.append(wr)
        vm.wait(("W", kb))
        if kb == 5 and opts.get("f2"): lstamp(2, True)
        if lg.ops: lg.wait_all()
        if opts.get("noconv"): steps = steps[-1:]
        nf, ns = len(fillers), len(steps)
        fi = 0
        for si, s in enumerate(steps):
            s()
            tgt = 0 if conv_first else min(nf, (si+1)*nf//ns)
            while fi < tgt:
                fillers[fi](); fi += 1
        while fi < nf:
            fillers[fi](); fi += 1
    stn = [0]
    def store_tiles(lst):
        regs = []
        for (slot, row0, half) in lst:
            r = ST + 4*(stn[0] % 12); stn[0] += 1
            regs.append(r)
            a(f"ds_read_b128 v[{r}:{r+3}], v{VOR} offset:{slot*4096}"); lg.issue(("o", r))
        for (slot, row0, half), r in zip(lst, regs):
            lg.wait(("o", r))
            if half:
                lab[0] += 1
                a("s_cmp_ge_u32 s3, 2"); a(f"s_cbranch_scc1 L_sk{lab[0]}")
            a(f"s_mov_b32 s52, {row0*9216}")
            a(f"buffer_store_dwordx4 v[{r}:{r+3}], v{VOS}, s[36:39], s52 offen {STFLAG}")
            if half: a.label(f"L_sk{lab[0]}")
            vm.issue("S", optional=half)
    def bar():
        if lg.ops: lg.wait_all()
        a("s_barrier")
    def lstamp(i, fine=False):
        if STAMP and fine == FINE: a(f"{MT} s[{64+2*i}:{65+2*i}]")
    lstamp(0)
    for n in range(9):
        if n < 8: fill = w_ops(n+1)[PRE:] + x1_ops(n+1)
        else: fill = []
        if n == 5: lstamp(1 if opts.get("f2") else 0, True)
        convert(n, fill)
        if n == 5: lstamp(3 if opts.get("f2") else 1, True)
        vm.wait(("X", n))
        if n == 5: lstamp(4 if opts.get("f2") else 2, True)
        if n == 0: lstamp(1)
        if n == 4: lstamp(2)
        if n == 8: lstamp(3)
        bar()
        if n == 5: lstamp(5 if opts.get("f2") else 3, True)
        if n == 4 and opts.get("f2"): lstamp(0, True)
        if n < 7:
            for f in w_ops(n+2)[:PRE]: f()
        elif n == 7:
            p0 = pair_ops(0)
            for f in p0[:PRE]: f()
    for f in p0[PRE:]: f()
    for f in pair_ops(1): f()
    vm.wait(("P", 0)); lstamp(4)
    if not opts.get("f2"): lstamp(4, True)
    bar()
    if not opts.get("f2"): lstamp(5, True)
    trow = lambda t: 288 if t == F else 16*t
    prow = lambda m, b: 16*(F + 2*m + b)
    for f in pair_ops(2): f()
    store_tiles([(p1_out[t], trow(t), t == F) for t in early])
    lstamp(6, True); vm.wait(("P", 1)); lstamp(7, True); bar()
    for f in pair_ops(3): f()
    store_tiles([(p1_out[t], trow(t), False) for t in late] + [(p2slot(0, 0), prow(0, 0), False)])
    vm.wait(("P", 2)); lstamp(5); bar()
    store_tiles([(p2slot(0, 1), prow(0, 1), False), (p2slot(1, 0), prow(1, 0), False)])
    vm.wait(("P", 3)); lstamp(6); bar()
    store_tiles([(p2slot(1, 1), prow(1, 1), False), (p2slot(2, 0), prow(2, 0), False)])
    bar()
    lstamp(7)
    store_tiles([(p2slot(2, 1), prow(2, 1), False), (p2slot(3, 0), prow(3, 0), False)])
    if STAMP:
        a("s_waitcnt vmcnt(0)")
        a("s_add_u32 s3, s3, 4")
        a("s_branch L_stamp")
    else:
        a("s_endpgm")

    a.label("L_compute")
    WP = 112
    ACC = 24
    FR1 = [8, 12, 16, 20]
    AC0, AC1, B0, B1, VO = 2, 3, 4, 5, 6
    a("v_and_b32 v10, 15, v0")
    a("v_lshrrev_b32 v11, 4, v0")
    a("v_lshrrev_b32 v12, 1, v10")
    a("v_xor_b32 v12, v12, v11")
    a(f"v_lshlrev_b32 v{AC0}, 7, v10")
    a(f"v_lshl_add_u32 v{AC0}, v12, 4, v{AC0}")
    a(f"v_add_u32 v{AC0}, {slot1(0)}, v{AC0}")
    a(f"v_xor_b32 v{AC1}, 64, v{AC0}")
    a("v_and_b32 v12, 2, v10"); a("v_lshlrev_b32 v12, 2, v12")
    a("v_lshrrev_b32 v13, 2, v10"); a("v_lshl_add_u32 v12, v13, 1, v12")
    a("v_and_b32 v13, 1, v10"); a("v_add_u32 v12, v12, v13")
    a("v_lshl_add_u32 v12, v11, 4, v12")
    a("s_lshl_b32 s50, s3, 12")
    a(f"v_lshlrev_b32 v{B0}, 4, v12"); a(f"v_add_u32 v{B0}, s50, v{B0}")
    a(f"v_xor_b32 v{B1}, 16, v{B0}")
    a("s_lshl_b32 s50, s3, 2"); a("v_add_u32 v12, s50, v11")
    a("v_and_b32 v13, 7, v10"); a("v_xor_b32 v12, v12, v13")
    a(f"v_lshlrev_b32 v{VO}, 8, v10"); a(f"v_lshl_add_u32 v{VO}, v12, 4, v{VO}")
    a("s_movk_i32 s51, 9216"); a("v_mul_lo_u32 v7, v10, s51"); a("v_lshl_add_u32 v7, v11, 4, v7")
    a("s_lshl_b32 s50, s3, 6"); a("v_add_u32 v7, s50, v7")
    a("s_waitcnt lgkmcnt(0)")
    srd(36, 14, "s48", O_BYTES)
    lc = Cnt(a, "lgkmcnt", 15)
    wreg = lambda ks, c: WP + 8*ks + 4*c
    def mfma1(acc, ks, c, fr, first):
        src = "0" if first else f"v[{acc+4*c}:{acc+4*c+3}]"
        a(f"v_mfma_f32_16x16x32_bf16 v[{acc+4*c}:{acc+4*c+3}], v[{wreg(ks,c)}:{wreg(ks,c)+3}], v[{fr}:{fr+3}], {src}")
    cvt1 = lambda acc, m: a(f"v_cvt_pk_bf16_f32 v{acc+m}, v{acc+2*m}, v{acc+2*m+1}")
    hm = 90
    a(f"s_mov_b32 s{hm}, 0x00ff00ff"); a(f"s_mov_b32 s{hm+1}, 0x00ff00ff")
    def epi_wr(acc, slot, half=False, areg=VO):
        if half: a(f"s_mov_b64 exec, s[{hm}:{hm+1}]")
        a(f"ds_write_b128 v{areg}, v[{acc}:{acc+3}] offset:{slot*4096}"); lc.issue("ow")
        if half: a("s_mov_b64 exec, -1")
    def epi_ops(acc, slot, half=False, areg=VO):
        return [lambda m=m: cvt1(acc, m) for m in range(4)] + [lambda: epi_wr(acc, slot, half, areg)]
    def cstamp(i):
        if STAMP: a(f"{MT} s[{64+2*i}:{65+2*i}]")
    NB1 = 4
    for kb in range(9):
        if FINE and kb == 5: cstamp(1)
        a("s_barrier")
        if FINE:
            if kb == 4: cstamp(0)
            if kb == 5: cstamp(2)
            if kb == 8: cstamp(3)
        else:
            if kb == 0: cstamp(0)
            if kb == 4: cstamp(1)
            if kb == 8: cstamp(2)
        for s in range(2):
            for c in range(2):
                r = wreg(2*kb+s, c)
                a(f"ds_read_b128 v[{r}:{r+3}], v{B1 if c else B0} offset:{(kb&1)*16384 + s*2048 + c*1024}"); lc.issue(("w", s))
        order = early + late
        jobs = [(t, s) for t in order for s in range(2)]
        nj = len(jobs)
        def rd(j):
            if opts.get("noCrd") and kb < 8: return
            t, s = jobs[j]
            fr = FR1[j % NB1]
            a(f"ds_read_b128 v[{fr}:{fr+3}], v{AC1 if s else AC0} offset:{t*2048}"); lc.issue(("a", j))
        for j in range(NB1-1): rd(j)
        hold = 3 if kb == 8 else 0
        fillq = []
        for j in range(nj - hold):
            t, s = jobs[j]
            lc.wait([("a", j), ("w", s)])
            sk = opts.get("noCmf") and kb < 8
            if not sk: mfma1(ACC + 8*t, 2*kb+s, 0, FR1[j % NB1], kb == 0 and s == 0)
            if j + NB1-1 < nj: rd(j+NB1-1)
            if not sk: mfma1(ACC + 8*t, 2*kb+s, 1, FR1[j % NB1], kb == 0 and s == 0)
            if kb == 8:
                if j >= 5 and j % 2 == 1 and jobs[j-4][0] in early:
                    tt = jobs[j-4][0]
                    fillq += epi_ops(ACC + 8*tt, p1_out[tt], half=(tt == F))
                for _ in range(opts.get("e8", 2)):
                    if fillq: fillq.pop(0)()
        while fillq: fillq.pop(0)()
        nb = slot1(kb+1) if kb < 8 else pslot(0)
        d = nb - slot1(kb)
        lc.wait_all()
        op = f"v_add_u32" if d >= 0 else "v_subrev_u32"
        a(f"{op} v{AC0}, {abs(d)}, v{AC0}"); a(f"{op} v{AC1}, {abs(d)}, v{AC1}")
    held = [((lambda fr, c, t=jobs[j][0], s=jobs[j][1]: mfma1(ACC + 8*t, 16+s, c, fr, False)), FR1[j % NB1]) for j in range(nj-3, nj)]
    XACC, YACC = ACC + 8*0, ACC + 8*1
    NB = 9
    heldregs = [fr for (_, fr) in held]
    free1 = [r for r in FR1 if r not in heldregs]
    extra_fr = [ACC + 8*2, ACC + 8*2 + 4, ACC + 8*3, ACC + 8*3 + 4, ACC + 8*4]
    ring = free1 + extra_fr + heldregs
    assert len(ring) == NB
    HOLD = 3
    WE = opts.get("we", 3)
    def pair_body(first):
        nonlocal held
        jobs = [(b, ks) for b in range(2) for ks in range(18)]
        def rd(j):
            b, ks = jobs[j]
            fr = ring[j % NB]
            a(f"ds_read_b128 v[{fr}:{fr+3}], v{AC1 if ks & 1 else AC0} offset:{b*18432 + (ks>>1)*2048}"); lc.issue(("p", j))
        nxt = 0
        pre = NB - HOLD
        hm_ = [(job, fr, c) for (job, fr) in held for c in range(2)]
        rd(0); rd(1); nxt = 2
        for n, (job, fr, c) in enumerate(hm_):
            job(fr, c)
            if nxt < pre: rd(nxt); nxt += 1
        while nxt < pre: rd(nxt); nxt += 1
        fillq = []
        for j in range(36 - HOLD):
            b, ks = jobs[j]
            if j % WE == 0: lc.wait(("p", min(j + WE - 1, 35)))
            acc = YACC if b else XACC
            mfma1(acc, ks, 0, ring[j % NB], ks == 0)
            if nxt < 36 and nxt - NB < j: rd(nxt); nxt += 1
            mfma1(acc, ks, 1, ring[j % NB], ks == 0)
            if j == 2:
                if first:
                    for tt in late: fillq += epi_ops(ACC + 8*tt, p1_out[tt])
                else:
                    fillq += epi_ops(YACC, 0, areg=B1)
            if j == 21: fillq += epi_ops(XACC, 0, areg=B0)
            if fillq: fillq.pop(0)()
            if first and j < 18 and fillq: fillq.pop(0)()
        assert not fillq and nxt == 36, (len(fillq), nxt)
        lc.wait_all()
        held = [((lambda fr, c, ks=jobs[j][1]: mfma1(YACC, ks, c, fr, False)), ring[j % NB]) for j in range(36-HOLD, 36)]
    a(f"v_add_u32 v{B0}, {8*4096}, v{VO}")
    if FINE: cstamp(4)
    a("s_barrier")
    cstamp(5 if FINE else 3)
    pair_body(True)
    if FINE: cstamp(6)
    a("s_mov_b32 s82, 1")
    a(f"s_mov_b32 s80, {-2*PSTR & 0xffffffff}")
    a.label("L_p2")
    a(f"v_add_u32 v{AC0}, s80, v{AC0}"); a(f"v_add_u32 v{AC1}, s80, v{AC1}")
    a(f"s_mov_b32 s80, {PSTR}")
    a(f"v_add_u32 v{B1}, 4096, v{B0}")
    a(f"v_xor_b32 v{B0}, 8192, v{B0}")
    a("s_barrier")
    lc.ops = []
    pair_body(False)
    a("s_add_u32 s82, s82, 1")
    a(f"s_cmp_lt_u32 s82, {NP}")
    a("s_cbranch_scc1 L_p2")
    a("s_barrier")
    cstamp(7 if FINE else 4)
    for (job, fr) in held:
        job(fr, 0); job(fr, 1)
    a(f"s_mov_b32 s52, {prow(NP-1, 1)*9216}")
    a("s_nop 6")
    for m in range(4): cvt1(YACC, m)
    a(f"buffer_store_dwordx4 v[{YACC}:{YACC+3}], v7, s[36:39], s52 offen {STFLAG}")
    if STAMP:
        a("s_waitcnt vmcnt(0)")
        a.label("L_stamp")
        a("s_memrealtime s[58:59]"); a(f"{MT} s[94:95]")
        a("s_getreg_b32 s96, hwreg(HW_REG_XCC_ID)"); a("s_getreg_b32 s97, hwreg(HW_REG_HW_ID)")
        a("s_waitcnt lgkmcnt(0)")
        a("s_mov_b32 s84, s56"); a("s_and_b32 s85, s57, 0xffff"); a("s_mov_b32 s86, 0x100000"); a("s_mov_b32 s87, 0x20000")
        a("s_lshl_b32 s98, s2, 3"); a("s_add_u32 s98, s98, s3"); a("s_lshl_b32 s98, s98, 6")
        vals = ["s60", "s58", "s62", "s94"] + [f"s{64+2*i}" for i in range(8)]
        vals += ["0", "0x5a5a1234", "s97", "s96"]
        a("v_mov_b32 v1, 0")
        for i, v in enumerate(vals):
            a(f"v_mov_b32 v2, {v}"); a(f"v_cmp_eq_u32 vcc, {i}, v0"); a("s_nop 1"); a("v_cndmask_b32 v1, v1, v2, vcc")
        a("v_lshlrev_b32 v2, 2, v0"); a("v_cmp_gt_u32 vcc, 16, v0"); a("s_and_saveexec_b64 s[100:101], vcc")
        a("buffer_store_dword v1, v2, s[84:87], s98 offen"); a("s_waitcnt vmcnt(0)")
    a.label("L_end")
    open(out, "w").write(wrap(a.text(), (256,1,1), 512, LDS, 256, 102, 256))

if __name__ == "__main__":
    gen("v3.s", {})
    gen("v3s.s", {"stamp": True})
    gen("v3a.s", {"stamp": True, "fine": True, "f2": True})
    gen("v3b.s", {"stamp": True, "fine": True, "f2": True, "noconv": True, "noCrd": True, "noCmf": True})
    gen("v3c.s", {"stamp": True, "fine": True, "f2": True, "noconv": True})
    gen("v3d.s", {"stamp": True, "fine": True, "f2": True, "lprio": 3})
    gen("v3e.s", {"stamp": True, "fine": True, "f2": True, "pre": 8})
```

```python
import sys
from common import *
from gen_v1 import Cnt

def gen(out, opts):
    o = lambda k, d=None: opts.get(k, d)
    STAMP = o("stamp", False); STFLAG = o("stflag", "sc1")
    MT = "s_memrealtime" if o("rt") else "s_memtime"
    XBY = o("xby", "C"); XPOS = o("xpos", "start"); WRM = o("wr", "end"); PRE = o("pre", 4)
    LS = o("ls", {}); CS = o("cs", {})
    a = Asm()
    F = 10; NP = 4
    XBASE = 12*4096; S1 = 21504
    slot1 = lambda u: XBASE + (u % 3)*S1
    PSTR = 38912
    pslot = lambda m: XBASE + ((m+2) % 3)*PSTR
    LDS = 163840
    p2slot = lambda m, b: 8 + (2*m + b) % 4
    ATAB = 8*4096
    E8 = o("e8n", 5)
    p1_order = [0, 1, 2, 3, 4, F, 5, 6, 7, 8, 9]
    wstage = {}
    for n_, t_ in enumerate(p1_order):
        wstage[t_] = 8 if n_ < E8 else (9 if n_ < E8 + o("e9n", 5) else 10)
    free8 = [4, 5, 6, 7, 9, 10]; free9 = [0, 1, 2, 3, 11]
    p1_out = {}
    for t_ in p1_order:
        if wstage[t_] == 8: p1_out[t_] = free8.pop(0)
    rest = free9 + [x for x in free8 if x >= 12]
    for t_ in p1_order:
        if wstage[t_] == 9: p1_out[t_] = rest.pop(0)
    for t_ in p1_order:
        if wstage[t_] == 9: assert p1_out[t_] not in (9, 10), p1_out
        if wstage[t_] == 10: p1_out[t_] = [x for x in (4, 5, 6, 7) if x not in [p1_out[u] for u in p1_out if wstage[u] >= 9]][0]
    early = p1_order; late = []
    trow = lambda t: 288 if t == F else 16*t
    prow = lambda m, b: 16*(F + 2*m + b)
    lab = [0]
    def stamp(tab, key):
        if STAMP and key in tab: a(f"{MT} s[{64+2*tab[key]}:{65+2*tab[key]}]")
    def srd(d, lo, off, size):
        if off is None:
            a(f"s_mov_b32 s{d}, s{lo}"); a(f"s_and_b32 s{d+1}, s{lo+1}, 0xffff"); a(f"s_mov_b32 s{d+2}, {size}")
        else:
            a(f"s_add_u32 s{d}, s{lo}, {off}"); a(f"s_addc_u32 s{d+1}, s{lo+1}, 0"); a(f"s_and_b32 s{d+1}, s{d+1}, 0xffff")
            a(f"s_sub_u32 s{d+2}, {size}, {off}")
        a(f"s_mov_b32 s{d+3}, 0x20000")
    def xdma_voff(dst):
        a("v_lshrrev_b32 v13, 3, v0")
        a("s_and_b32 s50, s3, 1"); a("s_lshl_b32 s50, s50, 2")
        a("v_lshrrev_b32 v14, 1, v13"); a("v_add_u32 v14, s50, v14")
        a("v_and_b32 v15, 7, v0"); a("v_xor_b32 v14, v14, v15")
        a("s_lshl_b32 s50, s3, 3"); a("v_add_u32 v13, s50, v13")
        a("s_movk_i32 s51, 1152"); a(f"v_mul_lo_u32 v{dst}, v13, s51"); a(f"v_lshl_add_u32 v{dst}, v14, 4, v{dst}")
        a("s_lshl_b32 s53, s3, 10")
    def x1_ops(kb, vm, VX):
        def piece(j):
            a(f"s_add_u32 m0, s53, {slot1(kb) + j*4096}")
            a(f"s_mov_b32 s52, {32*j*1152 + kb*128}")
            a(f"buffer_load_dwordx4 v{VX}, s[16:19], s52 offen lds")
            vm.issue(("X", kb))
        def extra():
            lab[0] += 1
            a("s_cmp_lg_u32 s3, 0"); a(f"s_cbranch_scc1 L_sk{lab[0]}")
            a(f"s_mov_b32 m0, {slot1(kb) + F*2048}")
            a(f"s_mov_b32 s52, {288*1152 + kb*128}")
            a(f"buffer_load_dwordx4 v{VX}, s[16:19], s52 offen lds")
            a.label(f"L_sk{lab[0]}")
            vm.issue(("X", kb), optional=True)
        return [lambda j=j: piece(j) for j in range(F//2)] + [extra]
    if STAMP:
        a("s_memrealtime s[60:61]"); a(f"{MT} s[62:63]")
    a("s_load_dwordx4 s[4:7], s[0:1], 0")
    a("s_load_dwordx4 s[8:11], s[0:1], 16")
    a("s_load_dwordx4 s[12:15], s[0:1], 32")
    if STAMP: a(f"s_load_dwordx2 s[56:57], s[0:1], {48 if o('dbg') else 56}")
    a("s_and_b32 s40, s2, 7"); a("s_lshr_b32 s41, s2, 3")
    a("s_mul_i32 s42, s40, 63"); a("s_lshr_b32 s43, s42, 1")
    a("s_add_u32 s42, s42, 63"); a("s_lshr_b32 s42, s42, 1")
    a("s_add_u32 s43, s43, s41")
    a("s_cmp_ge_u32 s43, s42"); a("s_cbranch_scc1 L_end")
    a("s_mul_i32 s44, s43, 9363"); a("s_lshr_b32 s44, s44, 16")
    a("s_mul_i32 s45, s44, 7"); a("s_sub_u32 s45, s43, s45")
    a("v_lshrrev_b32 v1, 6, v0"); a("v_and_b32 v0, 63, v0")
    a("s_mul_i32 s46, s45, %d" % (292*1152))
    a("v_readfirstlane_b32 s3, v1")
    a("s_lshl_b32 s47, s44, 9")
    a("s_mul_i32 s48, s45, %d" % (292*9216)); a("s_lshl_b32 s49, s44, 8"); a("s_add_u32 s48, s48, s49")
    a("s_cmp_ge_u32 s3, 4"); a("s_cbranch_scc0 L_compute")

    a("s_sub_u32 s3, s3, 4")
    a("s_setreg_imm32_b32 hwreg(HW_REG_MODE, 4, 2), 3")
    VX, VA, VS, VWR0, VWR1, VOR, VOS, VAR, VXL, VXW = 3, 4, 5, 6, 7, 8, 9, 21, 23, 28
    NR = o("nraw", 2)
    if NR == 2:
        RAW = [32, 64]; AF = [96, 104]; SC = 112; NZ = 116; WO = 120; VWI = 136
        preg = lambda m: 144 + 36*(m-1); STB, STN = 32, 16
    else:
        RAW = [32, 64, 96]; AF = [128, 136]; SC = 144; NZ = 148; WO = 152; VWI = 168
        preg = lambda m: 32 if m == 3 else 176 + 36*(m-1); STB, STN = 68, 15
    a("v_and_b32 v10, 31, v0"); a("v_lshrrev_b32 v11, 5, v0")
    a("s_lshl_b32 s50, s3, 1"); a("v_add_u32 v12, s50, v11")
    a("s_mov_b32 s51, %d" % (8*18432))
    a(f"v_mul_lo_u32 v{VWI}, v12, s51"); a(f"v_lshl_add_u32 v{VWI}, v10, 4, v{VWI}")
    for i in range(1, 8): a(f"v_add_u32 v{VWI+i}, {i*18432}, v{VWI}")
    a("s_lshl_b32 s50, s44, 8")
    a(f"v_lshlrev_b32 v{VS}, 3, v10"); a(f"v_add_u32 v{VS}, s50, v{VS}")
    a("v_lshrrev_b32 v13, 1, v0"); a("v_and_b32 v14, 1, v0")
    a(f"v_lshlrev_b32 v{VA}, 7, v13"); a(f"v_lshl_add_u32 v{VA}, v14, 4, v{VA}")
    a("s_lshl_b32 s50, s3, 5"); a(f"v_add_u32 v{VA}, s50, v{VA}")
    xdma_voff(VX)
    a("s_waitcnt lgkmcnt(0)")
    srd(20, 6, "s47", W_BYTES)
    vm = Cnt(a, "vmcnt", 63); lg = Cnt(a, "lgkmcnt", 15)
    cur_soff = [None]
    def w_load(kb, i):
        r = RAW[kb % NR] + 4*i
        if cur_soff[0] != kb:
            a(f"s_mov_b32 s54, {kb*64*18432}"); cur_soff[0] = kb
        a(f"buffer_load_dwordx4 v[{r}:{r+3}], v{VWI+i}, s[20:23], s54 offen")
        vm.issue(("W", kb))
    w_ops = lambda kb: [lambda i=i: w_load(kb, i) for i in range(8)]
    for f in w_ops(0): f()
    srd(24, 8, None, S_BYTES); srd(28, 10, None, S_BYTES); srd(32, 12, None, A_BYTES)
    a(f"buffer_load_dwordx2 v[16:17], v{VS}, s[24:27], 0 offen"); vm.issue("C")
    a(f"buffer_load_dwordx2 v[18:19], v{VS}, s[28:31], 0 offen"); vm.issue("C")
    a(f"buffer_load_dwordx4 v[24:27], v{VA}, s[32:35], 0 offen"); vm.issue("C")
    srd(16, 4, "s46", X_BYTES)
    if XBY == "L":
        for f in x1_ops(0, vm, VX): f()
    XLA = o("xla", 1)
    if NR == 2:
        for f in w_ops(1)[:PRE]: f()
    else:
        for f in w_ops(1)[:PRE]: f()
    srd(36, 14, "s48", O_BYTES)
    a("s_and_b32 s55, s3, 1"); a("s_lshl_b32 s55, s55, 10")
    a("s_lshr_b32 s50, s3, 1"); a("s_mul_i32 s50, s50, 18432"); a("s_add_u32 s55, s55, s50")
    a("v_lshrrev_b32 v13, 3, v10"); a("v_lshlrev_b32 v13, 12, v13")
    a("v_and_b32 v14, 1, v10"); a("v_lshl_add_u32 v13, v14, 10, v13")
    a("v_and_b32 v15, 6, v10"); a("v_add_u32 v15, v15, v14")
    a("s_and_b32 s50, s3, 1"); a("s_lshl_b32 s50, s50, 1"); a("v_add_u32 v20, s50, v11")
    a("v_lshl_add_u32 v15, v20, 4, v15"); a("v_lshl_add_u32 v13, v15, 4, v13")
    a("s_lshr_b32 s50, s3, 1"); a("s_lshl_b32 s50, s50, 11")
    a(f"v_add_u32 v{VWR0}, s50, v13"); a(f"v_xor_b32 v{VWR1}, 16, v{VWR0}")
    a("v_lshrrev_b32 v13, 4, v0"); a("s_lshl_b32 s50, s3, 2"); a("v_add_u32 v13, s50, v13")
    a("v_and_b32 v14, 15, v0"); a("v_and_b32 v15, 7, v13"); a("v_xor_b32 v15, v15, v14")
    a(f"v_lshlrev_b32 v{VOR}, 8, v13"); a(f"v_lshl_add_u32 v{VOR}, v15, 4, v{VOR}")
    a("s_movk_i32 s51, 9216"); a(f"v_mul_lo_u32 v{VOS}, v13, s51"); a(f"v_lshl_add_u32 v{VOS}, v14, 4, v{VOS}")
    a(f"s_add_u32 s50, s53, {ATAB}")
    a("v_min_u32 v22, 31, v0"); a("v_lshlrev_b32 v22, 5, v22"); a("v_add_u32 v22, s50, v22")
    a(f"v_lshlrev_b32 v{VAR}, 5, v11"); a(f"v_add_u32 v{VAR}, s50, v{VAR}")
    vm.wait("C")
    for i in range(4):
        a(f"v_lshlrev_b32 v{AF[0]+2*i}, 16, v{24+i}"); a(f"v_and_b32 v{AF[0]+2*i+1}, 0xffff0000, v{24+i}")
    a("s_mov_b32 s50, 0x58000000")
    for i in range(8): a(f"v_mul_f32 v{AF[0]+i}, s50, v{AF[0]+i}")
    a(f"ds_write_b128 v22, v[{AF[0]}:{AF[0]+3}]"); a(f"ds_write_b128 v22, v[{AF[0]+4}:{AF[0]+7}] offset:16")
    for i in range(2):
        a(f"v_lshlrev_b32 v{SC+2*i}, 16, v{16+i}"); a(f"v_and_b32 v{SC+2*i+1}, 0xffff0000, v{16+i}")
        a(f"v_lshlrev_b32 v{NZ+2*i}, 16, v{18+i}"); a(f"v_and_b32 v{NZ+2*i+1}, 0xffff0000, v{18+i}")
    a("s_mov_b32 s50, 0xa7000000")
    a("s_mov_b32 s51, 0x71800000")
    for e in range(4):
        a(f"v_mul_f32 v{NZ+e}, v{NZ+e}, v{SC+e}"); a(f"v_mul_f32 v{NZ+e}, s50, v{NZ+e}"); a(f"v_mul_f32 v{SC+e}, s51, v{SC+e}")
    a("s_waitcnt lgkmcnt(0)")
    def a_read(kb):
        r = AF[kb & 1]
        a(f"ds_read_b128 v[{r}:{r+3}], v{VAR} offset:{kb*64}"); a(f"ds_read_b128 v[{r+4}:{r+7}], v{VAR} offset:{kb*64+16}")
        lg.issue("a"); lg.issue("a")
    a_read(0)
    def convert(kb, fillers):
        R = RAW[kb % NR]; A = AF[kb & 1]
        steps = []
        def wr(e):
            a(f"ds_write_b128 v{VWR1 if e & 1 else VWR0}, v[{WO+4*e}:{WO+4*e+3}] offset:{(kb&1)*16384 + (e>>1)*128}"); lg.issue("w")
        for e in range(4):
            for hf in range(2):
                def st(e=e, hf=hf):
                    if o("noconv"):
                        if hf == 1 and WRM == "spread": wr(e)
                        return
                    for i in range(4*hf, 4*hf+4): a(f"v_fma_f32 v{R+4*i+e}, v{R+4*i+e}, v{SC+e}, v{NZ+e}")
                    for i in range(4*hf, 4*hf+4): a(f"v_mul_f32 v{R+4*i+e}, v{R+4*i+e}, v{A+i}")
                    for m in (2*hf, 2*hf+1): a(f"v_cvt_pk_bf16_f32 v{WO+4*e+m}, v{R+8*m+e}, v{R+8*m+4+e}")
                    if hf == 1 and WRM == "spread": wr(e)
                steps.append(st)
        vm.wait(("W", kb))
        stamp(LS, f"w{kb}")
        lg.wait("a")
        if kb < 8: a_read(kb+1)
        nf, ns = len(fillers), len(steps); fi = 0
        for si, s in enumerate(steps):
            s()
            while fi < min(nf, (si+1)*nf//ns + (1 if nf else 0)):
                fillers[fi](); fi += 1
        while fi < nf:
            fillers[fi](); fi += 1
        if WRM != "spread":
            for e in range(4): wr(e)
    def p0_ops(m=0):
        def piece(kb):
            a(f"s_add_u32 m0, s55, {pslot(m) + kb*2048}")
            a(f"s_mov_b32 s52, {(16*(F+2*m))*1152 + kb*128}")
            a(f"buffer_load_dwordx4 v{VX}, s[16:19], s52 offen lds")
            vm.issue(("P", m))
        return [lambda kb=kb: piece(kb) for kb in range(9)]
    def preg_ops(m):
        def piece(kb):
            if kb == 0: a(f"s_mov_b32 s54, {(16*(F+2*m))*1152}")
            r = preg(m) + 4*kb
            a(f"buffer_load_dwordx4 v[{r}:{r+3}], v{VX}, s[16:19], s54 offen offset:{kb*128}")
            vm.issue(("P", m))
        return [lambda kb=kb: piece(kb) for kb in range(9)]
    def pwrite(m, inter=None):
        vm.wait(("P", m))
        if o("nopw"): return
        for kb in range(9):
            r = preg(m) + 4*kb
            a(f"ds_write_b128 v{VXW if m & 1 else VXW+1}, v[{r}:{r+3}] offset:{kb*2048}"); lg.issue("px")
            if inter: inter.pop(0)()
            elif o("pwpace", True): lg.wait_all()
    stq = []; stn = [0]
    def fetch_tiles(lst):
        for (slot, row0, half) in lst:
            r = STB + 4*(stn[0] % STN); stn[0] += 1
            a(f"ds_read_b128 v[{r}:{r+3}], v{VOR} offset:{slot*4096}"); lg.issue(("o", r))
            stq.append((r, row0, half))
    def do_stores(n):
        for _ in range(min(n, len(stq))):
            r, row0, half = stq.pop(0)
            lg.wait(("o", r))
            if o("nost"): continue
            if half:
                lab[0] += 1
                a("s_cmp_ge_u32 s3, 2"); a(f"s_cbranch_scc1 L_sk{lab[0]}")
            a(f"s_mov_b32 s52, {row0*9216}")
            a(f"buffer_store_dwordx4 v[{r}:{r+3}], v{VOS}, s[36:39], s52 offen {STFLAG}")
            if half: a.label(f"L_sk{lab[0]}")
            vm.issue("S", optional=half)
    def bar(n):
        stamp(LS, f"a{n}")
        keep = [t for t in lg.ops]
        if lg.ops: lg.wait_all()
        a("s_barrier")
        stamp(LS, f"b{n}")
    def mix(l1, l2):
        r = []; i = j = 0
        while i < len(l1) or j < len(l2):
            if j >= len(l2) or (i < len(l1) and i*len(l2) <= j*len(l1)): r.append(l1[i]); i += 1
            else: r.append(l2[j]); j += 1
        return r
    stamp(LS, "s")
    p0 = p0_ops()
    for n in range(9):
        fill = []
        if NR == 2:
            if n < 8:
                fill = w_ops(n+1)[PRE:]
                if XBY == "L": fill = mix(x1_ops(n+1, vm, VX), fill)
        else:
            if n < 7: fill = w_ops(n+2)
            elif n == 7: fill = p0
            if n == 0: fill = w_ops(1)[PRE:] + fill
            if XBY == "L" and n + XLA <= 8:
                assert XLA == 1
                fill = mix(x1_ops(n+XLA, vm, VX), fill)
        post = []
        if n == 0 and o("c0first", False): post, fill = fill, []
        convert(n, fill)
        stamp(LS, f"c{n}")
        if XBY == "L": vm.wait(("X", n))
        bar(n)
        for f in post: f()
        if NR == 2:
            if n < 7:
                for f in w_ops(n+2)[:PRE]: f()
            elif n == 7:
                for f in p0: f()
    for f in p0_ops(1): f()
    vm.wait(("P", 0)); bar(9)
    SP = o("sp", [5, 5, 4, 3])
    p1t = lambda st_: [(p1_out[t], trow(t), t == F) for t in p1_order if wstage[t] == st_]
    for f in p0_ops(2): f()
    fetch_tiles(p1t(8))
    do_stores(SP[0])
    vm.wait(("P", 1)); bar(10)
    for f in p0_ops(3): f()
    fetch_tiles(p1t(9) + [(p2slot(0, 0), prow(0, 0), False)])
    do_stores(SP[1])
    vm.wait(("P", 2)); bar(11)
    fetch_tiles(p1t(10) + [(p2slot(0, 1), prow(0, 1), False), (p2slot(1, 0), prow(1, 0), False)])
    do_stores(SP[2])
    vm.wait(("P", 3)); bar(12)
    fetch_tiles([(p2slot(1, 1), prow(1, 1), False), (p2slot(2, 0), prow(2, 0), False)])
    do_stores(SP[3]); bar(13)
    fetch_tiles([(p2slot(2, 1), prow(2, 1), False), (p2slot(3, 0), prow(3, 0), False)])
    do_stores(99)
    if STAMP:
        a("s_waitcnt vmcnt(0)"); a("s_add_u32 s3, s3, 4"); a("s_branch L_stamp")
    else:
        a("s_endpgm")

    a.label("L_compute")
    WP = 112; ACC = 24; FR1 = [8, 12, 16, 20]
    AC0, AC1, B0, B1, VO, CVX = 2, 3, 4, 5, 6, 7
    if XBY == "C":
        xdma_voff(CVX)
    a("v_and_b32 v10, 15, v0"); a("v_lshrrev_b32 v11, 4, v0")
    vc = Cnt(a, "vmcnt", 63)
    if XBY == "C":
        a("s_waitcnt lgkmcnt(0)")
        srd(16, 4, "s46", X_BYTES)
        for f in x1_ops(0, vc, CVX): f()
        for f in x1_ops(1, vc, CVX): f()
    a("v_lshrrev_b32 v12, 1, v10"); a("v_xor_b32 v12, v12, v11")
    a(f"v_lshlrev_b32 v{AC0}, 7, v10"); a(f"v_lshl_add_u32 v{AC0}, v12, 4, v{AC0}")
    a(f"v_add_u32 v{AC0}, {slot1(0)}, v{AC0}"); a(f"v_xor_b32 v{AC1}, 64, v{AC0}")
    a("v_and_b32 v12, 2, v10"); a("v_lshlrev_b32 v12, 2, v12")
    a("v_lshrrev_b32 v13, 2, v10"); a("v_lshl_add_u32 v12, v13, 1, v12")
    a("v_and_b32 v13, 1, v10"); a("v_add_u32 v12, v12, v13")
    a("v_lshl_add_u32 v12, v11, 4, v12")
    a("s_lshl_b32 s50, s3, 12")
    a(f"v_lshlrev_b32 v{B0}, 4, v12"); a(f"v_add_u32 v{B0}, s50, v{B0}"); a(f"v_xor_b32 v{B1}, 16, v{B0}")
    a("s_lshl_b32 s50, s3, 2"); a("v_add_u32 v12, s50, v11")
    a("v_and_b32 v13, 7, v10"); a("v_xor_b32 v12, v12, v13")
    a(f"v_lshlrev_b32 v{VO}, 8, v10"); a(f"v_lshl_add_u32 v{VO}, v12, 4, v{VO}")
    a("s_movk_i32 s51, 9216"); a("v_mul_lo_u32 v1, v10, s51"); a("v_lshl_add_u32 v1, v11, 4, v1")
    a("s_lshl_b32 s50, s3, 6"); a("v_add_u32 v1, s50, v1")
    a("s_waitcnt lgkmcnt(0)")
    srd(36, 14, "s48", O_BYTES)
    lc = Cnt(a, "lgkmcnt", 15)
    wreg = lambda ks, c: WP + 8*ks + 4*c
    def mfma1(acc, ks, c, fr, first):
        src = "0" if first else f"v[{acc+4*c}:{acc+4*c+3}]"
        a(f"v_mfma_f32_16x16x32_bf16 v[{acc+4*c}:{acc+4*c+3}], v[{wreg(ks,c)}:{wreg(ks,c)+3}], v[{fr}:{fr+3}], {src}")
    cvt1 = lambda acc, m: a(f"v_cvt_pk_bf16_f32 v{acc+m}, v{acc+2*m}, v{acc+2*m+1}")
    a("s_mov_b32 s90, 0x00ff00ff"); a("s_mov_b32 s91, 0x00ff00ff")
    def epi_wr(acc, slot, half=False, areg=VO):
        if half: a("s_mov_b64 exec, s[90:91]")
        a(f"ds_write_b128 v{areg}, v[{acc}:{acc+3}] offset:{slot*4096}"); lc.issue("ow")
        if half: a("s_mov_b64 exec, -1")
    def epi_ops(acc, slot, half=False, areg=VO):
        return [lambda m=m: cvt1(acc, m) for m in range(4)] + [lambda: epi_wr(acc, slot, half, areg)]
    if XBY == "C": vc.wait(("X", 0))
    H1 = o("h1", 3)
    EXT = [wreg(16, 0), wreg(16, 1), wreg(17, 0), wreg(17, 1)]
    tiles = early + late
    nj = 2*len(tiles)
    def bufs(kb):
        if kb < 7: seq = [(FR1 + EXT)[(kb*nj + j) % 8] for j in range(nj)]
        elif kb == 7:
            seq = []
            for j in range(nj):
                if j < nj - 8: seq.append((FR1 + EXT)[(kb*nj + j) % 8])
                else: seq.append(None)
            prev = seq[nj-16:nj-8]
            e = [r for r in prev if r in EXT]; f = [r for r in prev if r in FR1]
            seq[nj-8:] = e + f
        else:
            last = bufs(7)[-4:]
            seq = [last[j % 4] for j in range(nj)]
        return seq
    held = []
    free_at = {}
    done = [-1]
    for kb in range(9):
        stamp(CS, f"a{kb}")
        a("s_barrier")
        stamp(CS, f"b{kb}")
        xo = x1_ops(kb+2, vc, CVX) if (XBY == "C" and kb+2 <= 8) else []
        jobs = [(t, s) for t in tiles for s in range(2)]
        bf = bufs(kb)
        nxt = [0]
        def rd():
            j = nxt[0]
            if j >= nj: return False
            fr = bf[j]
            if free_at.get(fr, -1) > done[0]: return False
            if j - (done[0] + 1 - kb*nj) >= o("dist", 6): return False
            t, s = jobs[j]
            a(f"ds_read_b128 v[{fr}:{fr+3}], v{AC1 if s else AC0} offset:{t*2048}"); lc.issue(("a", kb, j))
            free_at[fr] = kb*nj + j; nxt[0] += 1
            return True
        wq = [(s, c) for s in range(2) for c in range(2)]
        def wrd():
            s, c = wq.pop(0); r = wreg(2*kb+s, c)
            a(f"ds_read_b128 v[{r}:{r+3}], v{B1 if c else B0} offset:{(kb&1)*16384 + s*2048 + c*1024}"); lc.issue(("w", kb, s))
        wrd(); wrd(); rd()
        for (job, fr, gj) in held:
            job(fr, 0)
            if wq: wrd()
            else: rd()
            job(fr, 1); done[0] = gj
            if wq: wrd()
            else: rd()
        while wq: wrd()
        while rd(): pass
        if XPOS == "start":
            while xo: xo.pop(0)()
        fillq = []
        for j in range(nj - H1):
            t, s = jobs[j]
            assert nxt[0] > j
            if j % o("we1", 2) == 0 or kb == 8: lc.wait([("a", kb, min(j + (o("we1", 2)-1 if kb < 8 else 0), nxt[0]-1)), ("w", kb, 1 if kb < 8 else s)])
            sk = o("nomf") and kb < 8
            if not sk: mfma1(ACC + 8*t, 2*kb+s, 0, bf[j], kb == 0 and s == 0)
            rd()
            if not sk: mfma1(ACC + 8*t, 2*kb+s, 1, bf[j], kb == 0 and s == 0)
            done[0] = kb*nj + j
            if nxt[0] - j - 1 < o("dist", 6) - 1 and kb != 8: rd()
            if XPOS == "spread" and xo and j % 3 == 1: xo.pop(0)()
            if kb == 8:
                if j >= 5 and j % 2 == 1 and wstage[jobs[j-4][0]] == 8:
                    tt = jobs[j-4][0]
                    fillq += epi_ops(ACC + 8*tt, p1_out[tt], half=(tt == F))
                for _ in range(o("e8", 2)):
                    if fillq: fillq.pop(0)()
        while rd(): pass
        assert nxt[0] == nj, (kb, nxt[0])
        while fillq: fillq.pop(0)()
        while xo: xo.pop(0)()
        nb = slot1(kb+1) if kb < 8 else pslot(0)
        d = nb - slot1(kb)
        lc.wait_all()
        op = "v_add_u32" if d >= 0 else "v_subrev_u32"
        a(f"{op} v{AC0}, {abs(d)}, v{AC0}"); a(f"{op} v{AC1}, {abs(d)}, v{AC1}")
        if XBY == "C" and kb < 8: vc.wait(("X", kb+1))
        held = [((lambda fr, c, t=jobs[j][0], s=jobs[j][1], kb=kb: mfma1(ACC + 8*t, 2*kb+s, c, fr, kb == 0 and s == 0)), bf[j], kb*nj + j) for j in range(nj-H1, nj)]
    held = [(job, fr) for (job, fr, gj) in held]
    assert H1 == 3
    XACC, YACC = ACC, ACC + 8
    NB = 9; HOLD = 3; WE = o("we", 3)
    heldregs = [fr for (_, fr) in held]
    ring = [r for r in FR1 if r not in heldregs] + [ACC+16, ACC+20, ACC+24, ACC+28, ACC+32] + heldregs
    def pair_body(pi):
        nonlocal held
        jobs = [(b, ks) for b in range(2) for ks in range(18)]
        def rd(j):
            b, ks = jobs[j]; fr = ring[j % NB]
            a(f"ds_read_b128 v[{fr}:{fr+3}], v{AC1 if ks & 1 else AC0} offset:{b*18432 + (ks>>1)*2048}"); lc.issue(("p", j))
        pre = NB - HOLD
        hm_ = [(job, fr, c) for (job, fr) in held for c in range(2)]
        rd(0); rd(1); nxt = 2
        for (job, fr, c) in hm_:
            job(fr, c)
            if nxt < pre: rd(nxt); nxt += 1
        fillq = []
        for j in range(36 - HOLD):
            b, ks = jobs[j]
            if j % WE == 0: lc.wait(("p", min(j + WE - 1, 35)))
            acc = YACC if b else XACC
            mfma1(acc, ks, 0, ring[j % NB], ks == 0)
            if nxt < 36 and nxt - NB < j: rd(nxt); nxt += 1
            mfma1(acc, ks, 1, ring[j % NB], ks == 0)
            if o("deep", True) and nxt < 36 and nxt - NB <= j and nxt - j - 1 < NB - 1 and not fillq: rd(nxt); nxt += 1
            if j == 2:
                if pi > 0: fillq += epi_ops(YACC, 0, areg=B1)
                if pi < 2:
                    for tt in p1_order:
                        if wstage[tt] == 9 + pi: fillq += epi_ops(ACC + 8*tt, p1_out[tt], half=(tt == F))
            if j == 22: fillq += epi_ops(XACC, 0, areg=B0)
            if fillq:
                f_ = fillq.pop(0)
                if not o("noepi"): f_()
                if len(fillq) > 32 - HOLD - j + 3: fillq.pop(0)()
        assert not fillq and nxt == 36, (len(fillq), nxt)
        lc.wait_all()
        held = [((lambda fr, c, ks=jobs[j][1]: mfma1(YACC, ks, c, fr, False)), ring[j % NB]) for j in range(36-HOLD, 36)]
    a(f"v_add_u32 v{B0}, {8*4096}, v{VO}")
    stamp(CS, "a9")
    a("s_barrier")
    stamp(CS, "b9")
    pair_body(0)
    stamp(CS, "a10")
    a(f"s_mov_b32 s80, {(-2*PSTR) & 0xffffffff}")
    def adv():
        a(f"v_add_u32 v{AC0}, s80, v{AC0}"); a(f"v_add_u32 v{AC1}, s80, v{AC1}")
        a(f"s_mov_b32 s80, {PSTR}")
        a(f"v_add_u32 v{B1}, 4096, v{B0}"); a(f"v_xor_b32 v{B0}, 8192, v{B0}")
    peel1 = any(v == 10 for v in wstage.values()) or o("unroll")
    if peel1:
        adv(); a("s_barrier"); stamp(CS, "b10"); pair_body(1); stamp(CS, "a11")
    if o("unroll"):
        for it in (2, 3):
            adv(); a("s_barrier"); stamp(CS, f"b{9+it}"); pair_body(it); stamp(CS, f"a{10+it}")
    else:
        a(f"s_mov_b32 s82, {2 if peel1 else 1}")
        a.label("L_p2")
        adv(); a("s_barrier"); lc.ops = []
        pair_body(2)
        a("s_add_u32 s82, s82, 1"); a(f"s_cmp_lt_u32 s82, {NP}"); a("s_cbranch_scc1 L_p2")
    a("s_barrier")
    stamp(CS, "b13")
    for (job, fr) in held:
        job(fr, 0); job(fr, 1)
    a(f"s_mov_b32 s52, {prow(NP-1, 1)*9216}")
    a("s_nop 6")
    for m in range(4): cvt1(YACC, m)
    a(f"buffer_store_dwordx4 v[{YACC}:{YACC+3}], v1, s[36:39], s52 offen {STFLAG}")
    if STAMP:
        a("s_waitcnt vmcnt(0)")
        a.label("L_stamp")
        a("s_memrealtime s[58:59]"); a(f"{MT} s[94:95]")
        a("s_getreg_b32 s96, hwreg(HW_REG_XCC_ID)"); a("s_getreg_b32 s97, hwreg(HW_REG_HW_ID)")
        a("s_waitcnt lgkmcnt(0)")
        if o("dbg"):
            a("s_mov_b32 s84, s56"); a("s_and_b32 s85, s57, 0xffff"); a("s_mov_b32 s86, 256"); a("s_mov_b32 s87, 0x20000")
            a("s_not_b32 s98, s60")
            a("v_mov_b32 v1, s58"); a("v_mov_b32 v2, s98"); a("v_cmp_eq_u32 vcc, 1, v0"); a("s_nop 1"); a("v_cndmask_b32 v1, v1, v2, vcc")
            a("v_mov_b32 v2, s60"); a("v_cmp_eq_u32 vcc, 2, v0"); a("s_nop 1"); a("v_cndmask_b32 v1, v1, v2, vcc")
            a("v_lshlrev_b32 v2, 2, v0"); a("v_cmp_gt_u32 vcc, 3, v0"); a("s_and_saveexec_b64 s[100:101], vcc")
            a("buffer_atomic_umax v1, v2, s[84:87], 0 offen")
            a("s_mov_b64 exec, s[100:101]")
            a(f"s_cmp_lg_u32 s2, {o('dbg')}"); a("s_cbranch_scc1 L_end")
            a("s_and_b32 s99, s3, 3"); a("s_cmp_lg_u32 s99, 1"); a("s_cbranch_scc1 L_end")
            a("v_mov_b32 v1, 0")
            for i in range(8):
                src = f"s{64+2*i}" if i < 7 else "s94"
                a(f"s_sub_u32 s99, {src}, s62"); a(f"v_mov_b32 v2, s99"); a(f"v_cmp_eq_u32 vcc, {i}, v0"); a("s_nop 1"); a("v_cndmask_b32 v1, v1, v2, vcc")
            a("s_cmp_ge_u32 s3, 4"); a("s_cselect_b32 s98, 44, 12"); a("s_cselect_b32 s99, 5, 8")
            a("v_lshlrev_b32 v2, 2, v0"); a("v_cmp_gt_u32 vcc, s99, v0"); a("s_and_saveexec_b64 s[100:101], vcc")
            a("buffer_store_dword v1, v2, s[84:87], s98 offen"); a("s_waitcnt vmcnt(0)")
        else:
            a("s_mov_b32 s84, s56"); a("s_and_b32 s85, s57, 0xffff"); a("s_mov_b32 s86, 0x100000"); a("s_mov_b32 s87, 0x20000")
            a("s_lshl_b32 s98, s2, 3"); a("s_add_u32 s98, s98, s3"); a("s_lshl_b32 s98, s98, 6")
            vals = ["s60", "s58", "s62", "s94"] + [f"s{64+2*i}" for i in range(8)] + ["0", "0x5a5a1234", "s97", "s96"]
            a("v_mov_b32 v1, 0")
            for i, v in enumerate(vals):
                a(f"v_mov_b32 v2, {v}"); a(f"v_cmp_eq_u32 vcc, {i}, v0"); a("s_nop 1"); a("v_cndmask_b32 v1, v1, v2, vcc")
            a("v_lshlrev_b32 v2, 2, v0"); a("v_cmp_gt_u32 vcc, 16, v0"); a("s_and_saveexec_b64 s[100:101], vcc")
            a("buffer_store_dword v1, v2, s[84:87], s98 offen"); a("s_waitcnt vmcnt(0)")
    a.label("L_end")
    open(out, "w").write(wrap(a.text(), (256,1,1), 512, LDS, 256, 102, 256))

def st(*keys): return {k: i for i, k in enumerate(keys)}
STD = dict(stamp=True, rt=True, cs=st("b0", "b4", "b8", "a9", "b9", "a10", "b13"), ls=st("s", "a0", "a4", "a8", "a9", "a10", "a11", "a12"))
if __name__ == "__main__":
    B = dict(nraw=3, xby="L", wr="spread")
    F2 = dict(B, stamp=True, rt=True, unroll=True, cs=st("b0", "b4", "b8", "b9", "b10", "b11", "b12", "b13"), ls=st("s", "a8", "a9", "a10", "a11", "a12", "a13"))
    gen("v7.s", B)
    gen("v7a.s", dict(F2))
    gen("v7b.s", dict(F2, deep=False))
    gen("v7c.s", dict(F2, c0first=False))
    gen("v7d.s", dict(F2, c0first=False, sp=[5,6,5,3]))
    gen("v7e.s", dict(F2, c0first=False, e8=3))
    gen("v7f.s", dict(F2, c0first=False, we=2))
    D = dict(B, stamp=True, rt=True, cs=st("b0", "b4", "b8", "b9", "b10", "a11", "b13"), ls=st("s", "a0", "a9", "a10", "a11"))
    gen("v7x.s", dict(D, dbg=129))
    gen("v7y.s", dict(D, dbg=4))
```

```python
import sys
from common import *
from gen_v1 import Cnt

def gen(out, opts):
    o = lambda k, d=None: opts.get(k, d)
    STAMP = o("stamp", False); STFLAG = o("stflag", "sc1")
    MT = "s_memrealtime" if o("rt") else "s_memtime"
    XBY = o("xby", "C"); XPOS = o("xpos", "start"); WRM = o("wr", "end"); PRE = o("pre", 4)
    LS = o("ls", {}); CS = o("cs", {})
    a = Asm()
    F = 10; NP = 4
    XBASE = 12*4096; S1 = 21504
    slot1 = lambda u: XBASE + (u % 3)*S1
    PSTR = 38912
    pslot = lambda m: XBASE + ((m+2) % 3)*PSTR
    LDS = 163840
    p2slot = lambda m, b: 8 + (2*m + b) % 4
    ATAB = 8*4096
    E8 = o("e8n", 5)
    p1_order = [0, 1, 2, 3, 4, F, 5, 6, 7, 8, 9]
    wstage = {}
    for n_, t_ in enumerate(p1_order):
        wstage[t_] = 8 if n_ < E8 else (9 if n_ < E8 + o("e9n", 5) else 10)
    free8 = [4, 5, 6, 7, 9, 10]; free9 = [0, 1, 2, 3, 11]
    p1_out = {}
    for t_ in p1_order:
        if wstage[t_] == 8: p1_out[t_] = free8.pop(0)
    rest = free9 + [x for x in free8 if x >= 12]
    for t_ in p1_order:
        if wstage[t_] == 9: p1_out[t_] = rest.pop(0)
    for t_ in p1_order:
        if wstage[t_] == 9: assert p1_out[t_] not in (9, 10), p1_out
        if wstage[t_] == 10: p1_out[t_] = [x for x in (4, 5, 6, 7) if x not in [p1_out[u] for u in p1_out if wstage[u] >= 9]][0]
    early = p1_order; late = []
    trow = lambda t: 288 if t == F else 16*t
    prow = lambda m, b: 16*(F + 2*m + b)
    lab = [0]
    def stamp(tab, key):
        if STAMP and key in tab: a(f"{MT} s[{64+2*tab[key]}:{65+2*tab[key]}]")
    def srd(d, lo, off, size):
        if off is None:
            a(f"s_mov_b32 s{d}, s{lo}"); a(f"s_and_b32 s{d+1}, s{lo+1}, 0xffff"); a(f"s_mov_b32 s{d+2}, {size}")
        else:
            a(f"s_add_u32 s{d}, s{lo}, {off}"); a(f"s_addc_u32 s{d+1}, s{lo+1}, 0"); a(f"s_and_b32 s{d+1}, s{d+1}, 0xffff")
            a(f"s_sub_u32 s{d+2}, {size}, {off}")
        a(f"s_mov_b32 s{d+3}, 0x20000")
    def xdma_voff(dst):
        a("v_lshrrev_b32 v13, 3, v0")
        a("s_and_b32 s50, s3, 1"); a("s_lshl_b32 s50, s50, 2")
        a("v_lshrrev_b32 v14, 1, v13"); a("v_add_u32 v14, s50, v14")
        a("v_and_b32 v15, 7, v0"); a("v_xor_b32 v14, v14, v15")
        a("s_lshl_b32 s50, s3, 3"); a("v_add_u32 v13, s50, v13")
        a("s_movk_i32 s51, 1152"); a(f"v_mul_lo_u32 v{dst}, v13, s51"); a(f"v_lshl_add_u32 v{dst}, v14, 4, v{dst}")
        a("s_lshl_b32 s53, s3, 10")
    def x1_ops(kb, vm, VX):
        def piece(j):
            a(f"s_add_u32 m0, s53, {slot1(kb) + j*4096}")
            a(f"s_add_u32 s52, s{80+kb}, {32*j*1152}")
            a(f"buffer_load_dwordx4 v{VX}, s[16:19], s52 offen lds")
            vm.issue(("X", kb))
        def extra():
            lab[0] += 1
            a("s_cmp_lg_u32 s3, 0"); a(f"s_cbranch_scc1 L_sk{lab[0]}")
            a(f"s_mov_b32 m0, {slot1(kb) + F*2048}")
            a(f"s_add_u32 s52, s{80+kb}, {288*1152}")
            a(f"buffer_load_dwordx4 v{VX}, s[16:19], s52 offen lds")
            a.label(f"L_sk{lab[0]}")
            vm.issue(("X", kb), optional=True)
        return [lambda j=j: piece(j) for j in range(F//2)] + [extra]
    if STAMP:
        a("s_memrealtime s[60:61]"); a(f"{MT} s[62:63]")
    a("s_load_dwordx4 s[4:7], s[0:1], 0")
    a("s_load_dwordx4 s[8:11], s[0:1], 16")
    a("s_load_dwordx4 s[12:15], s[0:1], 32")
    if STAMP: a(f"s_load_dwordx2 s[56:57], s[0:1], {48 if o('dbg') else 56}")
    a("s_and_b32 s40, s2, 7"); a("s_lshr_b32 s41, s2, 3")
    a("s_mul_i32 s42, s40, 63"); a("s_lshr_b32 s43, s42, 1")
    a("s_add_u32 s42, s42, 63"); a("s_lshr_b32 s42, s42, 1")
    a("s_add_u32 s43, s43, s41")
    a("s_cmp_ge_u32 s43, s42"); a("s_cbranch_scc1 L_end")
    a("s_mul_i32 s44, s43, 9363"); a("s_lshr_b32 s44, s44, 16")
    a("s_mul_i32 s45, s44, 7"); a("s_sub_u32 s45, s43, s45")
    a("v_lshrrev_b32 v1, 6, v0"); a("v_and_b32 v0, 63, v0")
    if o("rot", True):
        a("s_sub_u32 s49, s43, s41")
        a("s_mul_i32 s50, s44, 7"); a("s_max_u32 s49, s49, s50"); a("s_add_u32 s51, s50, 7"); a("s_min_u32 s51, s51, s42")
        a("s_sub_u32 s51, s51, s49")
        a("s_sub_u32 s89, s43, s49"); a("s_mul_i32 s89, s89, 9")
        a("s_movk_i32 s52, 16384"); a("s_cmp_eq_u32 s51, 7"); a("s_cselect_b32 s52, 9363, s52"); a("s_cmp_eq_u32 s51, 3"); a("s_cselect_b32 s52, 21846, s52")
        a("s_mul_i32 s89, s89, s52"); a("s_lshr_b32 s89, s89, 16")
        a("s_cmp_gt_u32 s49, s50"); a("s_addc_u32 s89, s89, s44")
        a("s_mul_i32 s49, s89, 7282"); a("s_lshr_b32 s49, s49, 16"); a("s_mul_i32 s49, s49, 9"); a("s_sub_u32 s89, s89, s49")
    else:
        a("s_mov_b32 s89, 0")
    a("s_lshl_b32 s80, s89, 7")
    a("s_mul_i32 s46, s45, %d" % (292*1152))
    a("v_readfirstlane_b32 s3, v1")
    a("s_lshl_b32 s47, s44, 9")
    a("s_mul_i32 s48, s45, %d" % (292*9216)); a("s_lshl_b32 s49, s44, 8"); a("s_add_u32 s48, s48, s49")
    a("s_cmp_ge_u32 s3, 4"); a("s_cbranch_scc0 L_compute")

    a("s_sub_u32 s3, s3, 4")
    a("s_setreg_imm32_b32 hwreg(HW_REG_MODE, 4, 2), 3")
    VX, VA, VS, VWR0, VWR1, VOR, VOS, VAR, VXL, VXW = 3, 4, 5, 6, 7, 8, 9, 21, 23, 28
    NR = o("nraw", 2)
    if NR == 2:
        RAW = [32, 64]; AF = [96, 104]; SC = 112; NZ = 116; WO = 120; VWI = 136
        preg = lambda m: 144 + 36*(m-1); STB, STN = 32, 16
    else:
        RAW = [32, 64, 96]; AF = [128, 136]; SC = 144; NZ = 148; WO = 152; VWI = 168
        preg = lambda m: 32 if m == 3 else 176 + 36*(m-1); STB, STN = 68, 15
    a("v_and_b32 v10, 31, v0"); a("v_lshrrev_b32 v11, 5, v0")
    a("s_lshl_b32 s50, s3, 1"); a("v_add_u32 v12, s50, v11")
    a("s_mov_b32 s51, %d" % (8*18432))
    a(f"v_mul_lo_u32 v{VWI}, v12, s51"); a(f"v_lshl_add_u32 v{VWI}, v10, 4, v{VWI}")
    for i in range(1, 8): a(f"v_add_u32 v{VWI+i}, {i*18432}, v{VWI}")
    a("s_waitcnt lgkmcnt(0)")
    srd(20, 6, "s47", W_BYTES)
    vm = Cnt(a, "vmcnt", 63); lg = Cnt(a, "lgkmcnt", 15)
    cur_soff = [None]
    def w_load(kb, i):
        r = RAW[kb % NR] + 4*i
        if cur_soff[0] != kb:
            a(f"s_mul_i32 s54, s{80+kb}, 9216"); cur_soff[0] = kb
        a(f"buffer_load_dwordx4 v[{r}:{r+3}], v{VWI+i}, s[20:23], s54 offen {o('wflag', 'nt')}")
        vm.issue(("W", kb))
    w_ops = lambda kb: [lambda i=i: w_load(kb, i) for i in range(8)]
    for f in w_ops(0): f()
    a("s_lshl_b32 s50, s44, 8")
    a(f"v_lshlrev_b32 v{VS}, 3, v10"); a(f"v_add_u32 v{VS}, s50, v{VS}")
    a("v_lshrrev_b32 v13, 1, v0"); a("v_and_b32 v14, 1, v0")
    a("v_add_u32 v13, s89, v13"); a("v_subrev_u32 v15, 9, v13"); a("v_min_u32 v13, v13, v15")
    a(f"v_lshlrev_b32 v{VA}, 7, v13"); a(f"v_lshl_add_u32 v{VA}, v14, 4, v{VA}")
    a("s_lshl_b32 s50, s3, 5"); a(f"v_add_u32 v{VA}, s50, v{VA}")
    xdma_voff(VX)
    for n_ in range(1, 9):
        a(f"s_add_u32 s{80+n_}, s{79+n_}, 128"); a(f"s_cmp_eq_u32 s{80+n_}, 1152"); a(f"s_cselect_b32 s{80+n_}, 0, s{80+n_}")
    srd(24, 8, None, S_BYTES); srd(28, 10, None, S_BYTES); srd(32, 12, None, A_BYTES)
    a(f"buffer_load_dwordx2 v[16:17], v{VS}, s[24:27], 0 offen"); vm.issue("C")
    a(f"buffer_load_dwordx2 v[18:19], v{VS}, s[28:31], 0 offen"); vm.issue("C")
    a(f"buffer_load_dwordx4 v[24:27], v{VA}, s[32:35], 0 offen"); vm.issue("C")
    srd(16, 4, "s46", X_BYTES)
    if XBY == "L":
        for f in x1_ops(0, vm, VX): f()
    XLA = o("xla", 1)
    if NR == 2:
        for f in w_ops(1)[:PRE]: f()
    else:
        for f in w_ops(1)[:PRE]: f()
    srd(36, 14, "s48", O_BYTES)
    a("s_and_b32 s55, s3, 1"); a("s_lshl_b32 s55, s55, 10")
    a("s_lshr_b32 s50, s3, 1"); a("s_mul_i32 s50, s50, 18432"); a("s_add_u32 s55, s55, s50")
    a("v_lshrrev_b32 v13, 3, v10"); a("v_lshlrev_b32 v13, 12, v13")
    a("v_and_b32 v14, 1, v10"); a("v_lshl_add_u32 v13, v14, 10, v13")
    a("v_and_b32 v15, 6, v10"); a("v_add_u32 v15, v15, v14")
    a("s_and_b32 s50, s3, 1"); a("s_lshl_b32 s50, s50, 1"); a("v_add_u32 v20, s50, v11")
    a("v_lshl_add_u32 v15, v20, 4, v15"); a("v_lshl_add_u32 v13, v15, 4, v13")
    a("s_lshr_b32 s50, s3, 1"); a("s_lshl_b32 s50, s50, 11")
    a(f"v_add_u32 v{VWR0}, s50, v13"); a(f"v_xor_b32 v{VWR1}, 16, v{VWR0}")
    a("v_lshrrev_b32 v13, 4, v0"); a("s_lshl_b32 s50, s3, 2"); a("v_add_u32 v13, s50, v13")
    a("v_and_b32 v14, 15, v0"); a("v_and_b32 v15, 7, v13"); a("v_xor_b32 v15, v15, v14")
    a(f"v_lshlrev_b32 v{VOR}, 8, v13"); a(f"v_lshl_add_u32 v{VOR}, v15, 4, v{VOR}")
    a("s_movk_i32 s51, 9216"); a(f"v_mul_lo_u32 v{VOS}, v13, s51"); a(f"v_lshl_add_u32 v{VOS}, v14, 4, v{VOS}")
    a(f"s_add_u32 s50, s53, {ATAB}")
    a("v_min_u32 v22, 31, v0"); a("v_lshlrev_b32 v22, 5, v22"); a("v_add_u32 v22, s50, v22")
    a(f"v_lshlrev_b32 v{VAR}, 5, v11"); a(f"v_add_u32 v{VAR}, s50, v{VAR}")
    vm.wait("C")
    for i in range(4):
        a(f"v_lshlrev_b32 v{AF[0]+2*i}, 16, v{24+i}"); a(f"v_and_b32 v{AF[0]+2*i+1}, 0xffff0000, v{24+i}")
    a("s_mov_b32 s50, 0x58000000")
    for i in range(8): a(f"v_mul_f32 v{AF[0]+i}, s50, v{AF[0]+i}")
    a(f"ds_write_b128 v22, v[{AF[0]}:{AF[0]+3}]"); a(f"ds_write_b128 v22, v[{AF[0]+4}:{AF[0]+7}] offset:16")
    for i in range(2):
        a(f"v_lshlrev_b32 v{SC+2*i}, 16, v{16+i}"); a(f"v_and_b32 v{SC+2*i+1}, 0xffff0000, v{16+i}")
        a(f"v_lshlrev_b32 v{NZ+2*i}, 16, v{18+i}"); a(f"v_and_b32 v{NZ+2*i+1}, 0xffff0000, v{18+i}")
    a("s_mov_b32 s50, 0xa7000000")
    a("s_mov_b32 s51, 0x71800000")
    for e in range(4):
        a(f"v_mul_f32 v{NZ+e}, v{NZ+e}, v{SC+e}"); a(f"v_mul_f32 v{NZ+e}, s50, v{NZ+e}"); a(f"v_mul_f32 v{SC+e}, s51, v{SC+e}")
    a("s_waitcnt lgkmcnt(0)")
    def a_read(kb):
        r = AF[kb & 1]
        a(f"ds_read_b128 v[{r}:{r+3}], v{VAR} offset:{kb*64}"); a(f"ds_read_b128 v[{r+4}:{r+7}], v{VAR} offset:{kb*64+16}")
        lg.issue("a"); lg.issue("a")
    a_read(0)
    def convert(kb, fillers):
        R = RAW[kb % NR]; A = AF[kb & 1]
        steps = []
        def wr(e):
            a(f"ds_write_b128 v{VWR1 if e & 1 else VWR0}, v[{WO+4*e}:{WO+4*e+3}] offset:{(kb&1)*16384 + (e>>1)*128}"); lg.issue("w")
        for e in range(4):
            for hf in range(2):
                def st(e=e, hf=hf):
                    if o("noconv"):
                        if hf == 1 and WRM == "spread": wr(e)
                        return
                    for i in range(4*hf, 4*hf+4): a(f"v_fma_f32 v{R+4*i+e}, v{R+4*i+e}, v{SC+e}, v{NZ+e}")
                    for i in range(4*hf, 4*hf+4): a(f"v_mul_f32 v{R+4*i+e}, v{R+4*i+e}, v{A+i}")
                    for m in (2*hf, 2*hf+1): a(f"v_cvt_pk_bf16_f32 v{WO+4*e+m}, v{R+8*m+e}, v{R+8*m+4+e}")
                    if hf == 1 and WRM == "spread": wr(e)
                steps.append(st)
        vm.wait(("W", kb))
        stamp(LS, f"w{kb}")
        lg.wait("a")
        if kb < 8: a_read(kb+1)
        nf, ns = len(fillers), len(steps); fi = 0
        for si, s in enumerate(steps):
            s()
            while fi < min(nf, (si+1)*nf//ns + (1 if nf else 0)):
                fillers[fi](); fi += 1
        while fi < nf:
            fillers[fi](); fi += 1
        if WRM != "spread":
            for e in range(4): wr(e)
    def p0_ops(m=0):
        def piece(kb):
            a(f"s_add_u32 m0, s55, {pslot(m) + kb*2048}")
            a(f"s_add_u32 s52, s{80+kb}, {(16*(F+2*m))*1152}")
            a(f"buffer_load_dwordx4 v{VX}, s[16:19], s52 offen lds")
            vm.issue(("P", m))
        return [lambda kb=kb: piece(kb) for kb in range(9)]
    def preg_ops(m):
        def piece(kb):
            if kb == 0: a(f"s_mov_b32 s54, {(16*(F+2*m))*1152}")
            r = preg(m) + 4*kb
            a(f"buffer_load_dwordx4 v[{r}:{r+3}], v{VX}, s[16:19], s54 offen offset:{kb*128}")
            vm.issue(("P", m))
        return [lambda kb=kb: piece(kb) for kb in range(9)]
    def pwrite(m, inter=None):
        vm.wait(("P", m))
        if o("nopw"): return
        for kb in range(9):
            r = preg(m) + 4*kb
            a(f"ds_write_b128 v{VXW if m & 1 else VXW+1}, v[{r}:{r+3}] offset:{kb*2048}"); lg.issue("px")
            if inter: inter.pop(0)()
            elif o("pwpace", True): lg.wait_all()
    stq = []; stn = [0]
    def fetch_tiles(lst):
        for (slot, row0, half) in lst:
            r = STB + 4*(stn[0] % STN); stn[0] += 1
            a(f"ds_read_b128 v[{r}:{r+3}], v{VOR} offset:{slot*4096}"); lg.issue(("o", r))
            stq.append((r, row0, half))
    def do_stores(n):
        for _ in range(min(n, len(stq))):
            r, row0, half = stq.pop(0)
            lg.wait(("o", r))
            if o("nost"): continue
            if half:
                lab[0] += 1
                a("s_cmp_eq_u32 s45, 6"); a("s_cselect_b32 s50, 2, 1"); a("s_cmp_ge_u32 s3, s50"); a(f"s_cbranch_scc1 L_sk{lab[0]}")
            a(f"s_mov_b32 s52, {row0*9216}")
            a(f"buffer_store_dwordx4 v[{r}:{r+3}], v{VOS}, s[36:39], s52 offen {STFLAG}")
            if half: a.label(f"L_sk{lab[0]}")
            vm.issue("S", optional=half)
    def bar(n):
        stamp(LS, f"a{n}")
        keep = [t for t in lg.ops]
        if lg.ops: lg.wait_all()
        a("s_barrier")
        stamp(LS, f"b{n}")
    def mix(l1, l2):
        r = []; i = j = 0
        while i < len(l1) or j < len(l2):
            if j >= len(l2) or (i < len(l1) and i*len(l2) <= j*len(l1)): r.append(l1[i]); i += 1
            else: r.append(l2[j]); j += 1
        return r
    stamp(LS, "s")
    p0 = p0_ops()
    for n in range(9):
        fill = []
        if NR == 2:
            if n < 8:
                fill = w_ops(n+1)[PRE:]
                if XBY == "L": fill = mix(x1_ops(n+1, vm, VX), fill)
        else:
            if n < 7: fill = w_ops(n+2)
            elif n == 7: fill = p0
            if n == 0: fill = w_ops(1)[PRE:] + fill
            if XBY == "L" and n + XLA <= 8:
                assert XLA == 1
                fill = mix(x1_ops(n+XLA, vm, VX), fill)
        post = []
        if n == 0 and o("c0first", False): post, fill = fill, []
        convert(n, fill)
        stamp(LS, f"c{n}")
        if XBY == "L": vm.wait(("X", n))
        bar(n)
        for f in post: f()
        if NR == 2:
            if n < 7:
                for f in w_ops(n+2)[:PRE]: f()
            elif n == 7:
                for f in p0: f()
    for f in p0_ops(1): f()
    vm.wait(("P", 0)); bar(9)
    SP = o("sp", [5, 5, 4, 3])
    p1t = lambda st_: [(p1_out[t], trow(t), t == F) for t in p1_order if wstage[t] == st_]
    for f in p0_ops(2): f()
    fetch_tiles(p1t(8))
    do_stores(SP[0])
    vm.wait(("P", 1)); bar(10)
    for f in p0_ops(3): f()
    fetch_tiles(p1t(9) + [(p2slot(0, 0), prow(0, 0), False)])
    do_stores(SP[1])
    vm.wait(("P", 2)); bar(11)
    fetch_tiles(p1t(10) + [(p2slot(0, 1), prow(0, 1), False), (p2slot(1, 0), prow(1, 0), False)])
    do_stores(SP[2])
    vm.wait(("P", 3)); bar(12)
    fetch_tiles([(p2slot(1, 1), prow(1, 1), False), (p2slot(2, 0), prow(2, 0), False)])
    do_stores(SP[3]); bar(13)
    fetch_tiles([(p2slot(2, 1), prow(2, 1), False), (p2slot(3, 0), prow(3, 0), False)])
    do_stores(99)
    if STAMP:
        a("s_waitcnt vmcnt(0)"); a("s_add_u32 s3, s3, 4"); a("s_branch L_stamp")
    else:
        a("s_endpgm")

    a.label("L_compute")
    assert XBY == "L"
    if o("cpf", True):
        a("s_getpc_b64 s[50:51]")
        a.label("L_pc")
        a(f"s_sub_u32 s50, s50, L_pc-{NAME}_kernel"); a("s_subb_u32 s51, s51, 0")
        a("s_lshl_b32 s52, s41, 2"); a("s_add_u32 s52, s52, s3"); a("s_mul_i32 s52, s52, CPL*64")
        a("v_lshlrev_b32 v4, 6, v0"); a("v_add_u32 v4, s52, v4")
        a(f"v_min_u32 v4, L_end-{NAME}_kernel, v4")
        a("v_cmp_gt_u32 vcc, CPL, v0"); a("s_and_saveexec_b64 s[52:53], vcc")
        a("global_load_dword v255, v4, s[50:51]")
        a("s_mov_b64 exec, s[52:53]")
    WP = 112; ACC = 24; FR1 = [8, 12, 16, 20]
    AC0, AC1, B0, B1, VO, CVX = 2, 3, 4, 5, 6, 7
    if XBY == "C":
        xdma_voff(CVX)
    a("v_and_b32 v10, 15, v0"); a("v_lshrrev_b32 v11, 4, v0")
    vc = Cnt(a, "vmcnt", 63)
    if XBY == "C":
        a("s_waitcnt lgkmcnt(0)")
        srd(16, 4, "s46", X_BYTES)
        for f in x1_ops(0, vc, CVX): f()
        for f in x1_ops(1, vc, CVX): f()
    a("v_lshrrev_b32 v12, 1, v10"); a("v_xor_b32 v12, v12, v11")
    a(f"v_lshlrev_b32 v{AC0}, 7, v10"); a(f"v_lshl_add_u32 v{AC0}, v12, 4, v{AC0}")
    a(f"v_add_u32 v{AC0}, {slot1(0)}, v{AC0}"); a(f"v_xor_b32 v{AC1}, 64, v{AC0}")
    a("v_and_b32 v12, 2, v10"); a("v_lshlrev_b32 v12, 2, v12")
    a("v_lshrrev_b32 v13, 2, v10"); a("v_lshl_add_u32 v12, v13, 1, v12")
    a("v_and_b32 v13, 1, v10"); a("v_add_u32 v12, v12, v13")
    a("v_lshl_add_u32 v12, v11, 4, v12")
    a("s_lshl_b32 s50, s3, 12")
    a(f"v_lshlrev_b32 v{B0}, 4, v12"); a(f"v_add_u32 v{B0}, s50, v{B0}"); a(f"v_xor_b32 v{B1}, 16, v{B0}")
    a("s_lshl_b32 s50, s3, 2"); a("v_add_u32 v12, s50, v11")
    a("v_and_b32 v13, 7, v10"); a("v_xor_b32 v12, v12, v13")
    a(f"v_lshlrev_b32 v{VO}, 8, v10"); a(f"v_lshl_add_u32 v{VO}, v12, 4, v{VO}")
    a("s_movk_i32 s51, 9216"); a("v_mul_lo_u32 v1, v10, s51"); a("v_lshl_add_u32 v1, v11, 4, v1")
    a("s_lshl_b32 s50, s3, 6"); a("v_add_u32 v1, s50, v1")
    a("s_waitcnt lgkmcnt(0)")
    srd(36, 14, "s48", O_BYTES)
    lc = Cnt(a, "lgkmcnt", 15)
    wreg = lambda ks, c: WP + 8*ks + 4*c
    def mfma1(acc, ks, c, fr, first):
        src = "0" if first else f"v[{acc+4*c}:{acc+4*c+3}]"
        a(f"v_mfma_f32_16x16x32_bf16 v[{acc+4*c}:{acc+4*c+3}], v[{wreg(ks,c)}:{wreg(ks,c)+3}], v[{fr}:{fr+3}], {src}")
    cvt1 = lambda acc, m: a(f"v_cvt_pk_bf16_f32 v{acc+m}, v{acc+2*m}, v{acc+2*m+1}")
    a("s_mov_b32 s90, 0x00ff00ff"); a("s_mov_b32 s91, 0x00ff00ff")
    def epi_wr(acc, slot, half=False, areg=VO):
        if half: a("s_mov_b64 exec, s[90:91]")
        a(f"ds_write_b128 v{areg}, v[{acc}:{acc+3}] offset:{slot*4096}"); lc.issue("ow")
        if half: a("s_mov_b64 exec, -1")
    def epi_ops(acc, slot, half=False, areg=VO):
        return [lambda m=m: cvt1(acc, m) for m in range(4)] + [lambda: epi_wr(acc, slot, half, areg)]
    a("s_waitcnt vmcnt(0)")
    H1 = o("h1", 3)
    EXT = [wreg(16, 0), wreg(16, 1), wreg(17, 0), wreg(17, 1)]
    tiles = early + late
    nj = 2*len(tiles)
    def bufs(kb):
        if kb < 7: seq = [(FR1 + EXT)[(kb*nj + j) % 8] for j in range(nj)]
        elif kb == 7:
            seq = []
            for j in range(nj):
                if j < nj - 8: seq.append((FR1 + EXT)[(kb*nj + j) % 8])
                else: seq.append(None)
            prev = seq[nj-16:nj-8]
            e = [r for r in prev if r in EXT]; f = [r for r in prev if r in FR1]
            seq[nj-8:] = e + f
        else:
            last = bufs(7)[-4:]
            seq = [last[j % 4] for j in range(nj)]
        return seq
    held = []
    free_at = {}
    done = [-1]
    for kb in range(9):
        stamp(CS, f"a{kb}")
        a("s_barrier")
        stamp(CS, f"b{kb}")
        xo = x1_ops(kb+2, vc, CVX) if (XBY == "C" and kb+2 <= 8) else []
        jobs = [(t, s) for t in tiles for s in range(2)]
        bf = bufs(kb)
        nxt = [0]
        def rd():
            j = nxt[0]
            if j >= nj: return False
            fr = bf[j]
            if free_at.get(fr, -1) > done[0]: return False
            if j - (done[0] + 1 - kb*nj) >= o("dist", 6): return False
            t, s = jobs[j]
            a(f"ds_read_b128 v[{fr}:{fr+3}], v{AC1 if s else AC0} offset:{t*2048}"); lc.issue(("a", kb, j))
            free_at[fr] = kb*nj + j; nxt[0] += 1
            return True
        wq = [(s, c) for s in range(2) for c in range(2)]
        def wrd():
            s, c = wq.pop(0); r = wreg(2*kb+s, c)
            a(f"ds_read_b128 v[{r}:{r+3}], v{B1 if c else B0} offset:{(kb&1)*16384 + s*2048 + c*1024}"); lc.issue(("w", kb, s))
        wrd(); wrd(); rd()
        for (job, fr, gj) in held:
            job(fr, 0)
            if wq: wrd()
            else: rd()
            job(fr, 1); done[0] = gj
            if wq: wrd()
            else: rd()
        while wq: wrd()
        while rd(): pass
        if XPOS == "start":
            while xo: xo.pop(0)()
        fillq = []
        for j in range(nj - H1):
            t, s = jobs[j]
            assert nxt[0] > j
            if j % o("we1", 2) == 0 or kb == 8: lc.wait([("a", kb, min(j + (o("we1", 2)-1 if kb < 8 else 0), nxt[0]-1)), ("w", kb, 1 if kb < 8 else s)])
            sk = o("nomf") and kb < 8
            if not sk: mfma1(ACC + 8*t, 2*kb+s, 0, bf[j], kb == 0 and s == 0)
            rd()
            if not sk: mfma1(ACC + 8*t, 2*kb+s, 1, bf[j], kb == 0 and s == 0)
            done[0] = kb*nj + j
            if nxt[0] - j - 1 < o("dist", 6) - 1 and kb != 8: rd()
            if XPOS == "spread" and xo and j % 3 == 1: xo.pop(0)()
            if kb == 8:
                if j >= 5 and j % 2 == 1 and wstage[jobs[j-4][0]] == 8:
                    tt = jobs[j-4][0]
                    fillq += epi_ops(ACC + 8*tt, p1_out[tt], half=(tt == F))
                for _ in range(o("e8", 2)):
                    if fillq: fillq.pop(0)()
        while rd(): pass
        assert nxt[0] == nj, (kb, nxt[0])
        while fillq: fillq.pop(0)()
        while xo: xo.pop(0)()
        nb = slot1(kb+1) if kb < 8 else pslot(0)
        d = nb - slot1(kb)
        lc.wait_all()
        op = "v_add_u32" if d >= 0 else "v_subrev_u32"
        a(f"{op} v{AC0}, {abs(d)}, v{AC0}"); a(f"{op} v{AC1}, {abs(d)}, v{AC1}")
        if XBY == "C" and kb < 8: vc.wait(("X", kb+1))
        held = [((lambda fr, c, t=jobs[j][0], s=jobs[j][1], kb=kb: mfma1(ACC + 8*t, 2*kb+s, c, fr, kb == 0 and s == 0)), bf[j], kb*nj + j) for j in range(nj-H1, nj)]
    held = [(job, fr) for (job, fr, gj) in held]
    assert H1 == 3
    XACC, YACC = ACC, ACC + 8
    NB = 9; HOLD = 3; WE = o("we", 3)
    heldregs = [fr for (_, fr) in held]
    ring = [r for r in FR1 if r not in heldregs] + [ACC+16, ACC+20, ACC+24, ACC+28, ACC+32] + heldregs
    def pair_body(pi):
        nonlocal held
        jobs = [(b, ks) for b in range(2) for ks in range(18)]
        def rd(j):
            b, ks = jobs[j]; fr = ring[j % NB]
            a(f"ds_read_b128 v[{fr}:{fr+3}], v{AC1 if ks & 1 else AC0} offset:{b*18432 + (ks>>1)*2048}"); lc.issue(("p", j))
        pre = NB - HOLD
        hm_ = [(job, fr, c) for (job, fr) in held for c in range(2)]
        rd(0); rd(1); nxt = 2
        for (job, fr, c) in hm_:
            job(fr, c)
            if nxt < pre: rd(nxt); nxt += 1
        fillq = []
        for j in range(36 - HOLD):
            b, ks = jobs[j]
            if j % WE == 0: lc.wait(("p", min(j + WE - 1, 35)))
            acc = YACC if b else XACC
            mfma1(acc, ks, 0, ring[j % NB], ks == 0)
            if nxt < 36 and nxt - NB < j: rd(nxt); nxt += 1
            mfma1(acc, ks, 1, ring[j % NB], ks == 0)
            if o("deep", True) and nxt < 36 and nxt - NB <= j and nxt - j - 1 < NB - 1 and not fillq: rd(nxt); nxt += 1
            if j == 2:
                if pi > 0: fillq += epi_ops(YACC, 0, areg=B1)
                if pi < 2:
                    for tt in p1_order:
                        if wstage[tt] == 9 + pi: fillq += epi_ops(ACC + 8*tt, p1_out[tt], half=(tt == F))
            if j == 22: fillq += epi_ops(XACC, 0, areg=B0)
            if fillq:
                f_ = fillq.pop(0)
                if not o("noepi"): f_()
                if len(fillq) > 32 - HOLD - j + 3: fillq.pop(0)()
        assert not fillq and nxt == 36, (len(fillq), nxt)
        lc.wait_all()
        held = [((lambda fr, c, ks=jobs[j][1]: mfma1(YACC, ks, c, fr, False)), ring[j % NB]) for j in range(36-HOLD, 36)]
    a(f"v_add_u32 v{B0}, {8*4096}, v{VO}")
    stamp(CS, "a9")
    a("s_barrier")
    stamp(CS, "b9")
    pair_body(0)
    stamp(CS, "a10")
    a(f"s_mov_b32 s80, {(-2*PSTR) & 0xffffffff}")
    def adv():
        a(f"v_add_u32 v{AC0}, s80, v{AC0}"); a(f"v_add_u32 v{AC1}, s80, v{AC1}")
        a(f"s_mov_b32 s80, {PSTR}")
        a(f"v_add_u32 v{B1}, 4096, v{B0}"); a(f"v_xor_b32 v{B0}, 8192, v{B0}")
    peel1 = any(v == 10 for v in wstage.values()) or o("unroll")
    if peel1:
        adv(); a("s_barrier"); stamp(CS, "b10"); pair_body(1); stamp(CS, "a11")
    if o("unroll"):
        for it in (2, 3):
            adv(); a("s_barrier"); stamp(CS, f"b{9+it}"); pair_body(it); stamp(CS, f"a{10+it}")
    else:
        a(f"s_mov_b32 s82, {2 if peel1 else 1}")
        a.label("L_p2")
        adv(); a("s_barrier"); lc.ops = []
        pair_body(2)
        a("s_add_u32 s82, s82, 1"); a(f"s_cmp_lt_u32 s82, {NP}"); a("s_cbranch_scc1 L_p2")
    a("s_barrier")
    stamp(CS, "b13")
    for (job, fr) in held:
        job(fr, 0); job(fr, 1)
    a(f"s_mov_b32 s52, {prow(NP-1, 1)*9216}")
    a("s_nop 6")
    for m in range(4): cvt1(YACC, m)
    a(f"buffer_store_dwordx4 v[{YACC}:{YACC+3}], v1, s[36:39], s52 offen {STFLAG}")
    if STAMP:
        a("s_waitcnt vmcnt(0)")
        a.label("L_stamp")
        a("s_memrealtime s[58:59]"); a(f"{MT} s[94:95]")
        a("s_getreg_b32 s96, hwreg(HW_REG_XCC_ID)"); a("s_getreg_b32 s97, hwreg(HW_REG_HW_ID)")
        a("s_waitcnt lgkmcnt(0)")
        if o("dbg"):
            a("s_mov_b32 s84, s56"); a("s_and_b32 s85, s57, 0xffff"); a("s_mov_b32 s86, 256"); a("s_mov_b32 s87, 0x20000")
            a("s_not_b32 s98, s60")
            a("v_mov_b32 v1, s58"); a("v_mov_b32 v2, s98"); a("v_cmp_eq_u32 vcc, 1, v0"); a("s_nop 1"); a("v_cndmask_b32 v1, v1, v2, vcc")
            a("v_mov_b32 v2, s60"); a("v_cmp_eq_u32 vcc, 2, v0"); a("s_nop 1"); a("v_cndmask_b32 v1, v1, v2, vcc")
            a("v_lshlrev_b32 v2, 2, v0"); a("v_cmp_gt_u32 vcc, 3, v0"); a("s_and_saveexec_b64 s[100:101], vcc")
            a("buffer_atomic_umax v1, v2, s[84:87], 0 offen")
            a("s_mov_b64 exec, s[100:101]")
            a(f"s_cmp_lg_u32 s2, {o('dbg')}"); a("s_cbranch_scc1 L_end")
            a("s_and_b32 s99, s3, 3"); a("s_cmp_lg_u32 s99, 1"); a("s_cbranch_scc1 L_end")
            a("v_mov_b32 v1, 0")
            for i in range(8):
                src = f"s{64+2*i}" if i < 7 else "s94"
                a(f"s_sub_u32 s99, {src}, s62"); a(f"v_mov_b32 v2, s99"); a(f"v_cmp_eq_u32 vcc, {i}, v0"); a("s_nop 1"); a("v_cndmask_b32 v1, v1, v2, vcc")
            a("s_cmp_ge_u32 s3, 4"); a("s_cselect_b32 s98, 44, 12"); a("s_cselect_b32 s99, 5, 8")
            a("v_lshlrev_b32 v2, 2, v0"); a("v_cmp_gt_u32 vcc, s99, v0"); a("s_and_saveexec_b64 s[100:101], vcc")
            a("buffer_store_dword v1, v2, s[84:87], s98 offen"); a("s_waitcnt vmcnt(0)")
        else:
            a("s_mov_b32 s84, s56"); a("s_and_b32 s85, s57, 0xffff"); a("s_mov_b32 s86, 0x100000"); a("s_mov_b32 s87, 0x20000")
            a("s_lshl_b32 s98, s2, 3"); a("s_add_u32 s98, s98, s3"); a("s_lshl_b32 s98, s98, 6")
            vals = ["s60", "s58", "s62", "s94"] + [f"s{64+2*i}" for i in range(8)] + ["0", "0x5a5a1234", "s97", "s96"]
            a("v_mov_b32 v1, 0")
            for i, v in enumerate(vals):
                a(f"v_mov_b32 v2, {v}"); a(f"v_cmp_eq_u32 vcc, {i}, v0"); a("s_nop 1"); a("v_cndmask_b32 v1, v1, v2, vcc")
            a("v_lshlrev_b32 v2, 2, v0"); a("v_cmp_gt_u32 vcc, 16, v0"); a("s_and_saveexec_b64 s[100:101], vcc")
            a("buffer_store_dword v1, v2, s[84:87], s98 offen"); a("s_waitcnt vmcnt(0)")
    a.label("L_end")
    a(f".set CPL, (L_end-{NAME}_kernel+8191)/8192")
    open(out, "w").write(wrap(a.text(), (256,1,1), 512, LDS, 256, 102, 256))

def st(*keys): return {k: i for i, k in enumerate(keys)}
STD = dict(stamp=True, rt=True, cs=st("b0", "b4", "b8", "a9", "b9", "a10", "b13"), ls=st("s", "a0", "a4", "a8", "a9", "a10", "a11", "a12"))
if __name__ == "__main__":
    B = dict(nraw=3, xby="L", wr="spread")
    F2 = dict(B, stamp=True, rt=True, unroll=True, cs=st("b0", "b4", "b8", "b9", "b10", "b11", "b12", "b13"), ls=st("s", "a8", "a9", "a10", "a11", "a12", "a13"))
    gen("v8.s", B)
    gen("v8a.s", dict(F2))
    gen("v8b.s", dict(F2, cpf=False))
    gen("v8c.s", dict(F2, wflag=""))
    gen("v8d.s", dict(F2, rot=False, wflag=""))
    gen("v8e.s", dict(F2, c0first=True))
    gen("v8f.s", dict(F2, wr="end"))
    gen("h8a.s", dict(B, rot=False, wflag=""))
    gen("h8b.s", dict(B, rot=True, wflag=""))
    gen("h8c.s", dict(B, rot=False, wflag="nt"))
    gen("h8d.s", dict(B, rot=False, wflag="", cpf=False))
    gen("h8e.s", dict(B, rot=False, wflag="", stflag=""))
    gen("h8f.s", dict(B, rot=False, wflag="", stflag="nt"))
```

```python
import sys
from common import *
from gen_v1 import Cnt

def gen(out, opts):
    o = lambda k, d=None: opts.get(k, d)
    STAMP = o("stamp", False); STFLAG = o("stflag", "sc1")
    MT = "s_memrealtime" if o("rt") else "s_memtime"
    XBY = o("xby", "C"); XPOS = o("xpos", "start"); WRM = o("wr", "end"); PRE = o("pre", 4)
    LS = o("ls", {}); CS = o("cs", {})
    a = Asm()
    F = 10; NP = 4
    XBASE = 12*4096; S1 = 21504
    slot1 = lambda u: XBASE + (u % 3)*S1
    PSTR = 38912
    pslot = lambda m: XBASE + ((m+2) % 3)*PSTR
    LDS = 163840
    p2slot = lambda m, b: 8 + (2*m + b) % 4
    ATAB = 8*4096
    E8 = o("e8n", 5)
    p1_order = [0, 1, 2, 3, 4, F, 5, 6, 7, 8, 9]
    wstage = {}
    for n_, t_ in enumerate(p1_order):
        wstage[t_] = 8 if n_ < E8 else (9 if n_ < E8 + o("e9n", 5) else 10)
    free8 = [4, 5, 6, 7, 9, 10]; free9 = [0, 1, 2, 3, 11]
    p1_out = {}
    for t_ in p1_order:
        if wstage[t_] == 8: p1_out[t_] = free8.pop(0)
    rest = free9 + [x for x in free8 if x >= 12]
    for t_ in p1_order:
        if wstage[t_] == 9: p1_out[t_] = rest.pop(0)
    for t_ in p1_order:
        if wstage[t_] == 9: assert p1_out[t_] not in (9, 10), p1_out
        if wstage[t_] == 10: p1_out[t_] = [x for x in (4, 5, 6, 7) if x not in [p1_out[u] for u in p1_out if wstage[u] >= 9]][0]
    early = p1_order; late = []
    trow = lambda t: 288 if t == F else 16*t
    prow = lambda m, b: 16*(F + 2*m + b)
    lab = [0]
    def stamp(tab, key):
        if STAMP and key in tab: a(f"{MT} s[{64+2*tab[key]}:{65+2*tab[key]}]")
    def srd(d, lo, off, size):
        if off is None:
            a(f"s_mov_b32 s{d}, s{lo}"); a(f"s_and_b32 s{d+1}, s{lo+1}, 0xffff"); a(f"s_mov_b32 s{d+2}, {size}")
        else:
            a(f"s_add_u32 s{d}, s{lo}, {off}"); a(f"s_addc_u32 s{d+1}, s{lo+1}, 0"); a(f"s_and_b32 s{d+1}, s{d+1}, 0xffff")
            a(f"s_sub_u32 s{d+2}, {size}, {off}")
        a(f"s_mov_b32 s{d+3}, 0x20000")
    def xdma_voff(dst):
        a("v_lshrrev_b32 v13, 3, v0")
        a("s_and_b32 s50, s3, 1"); a("s_lshl_b32 s50, s50, 2")
        a("v_lshrrev_b32 v14, 1, v13"); a("v_add_u32 v14, s50, v14")
        a("v_and_b32 v15, 7, v0"); a("v_xor_b32 v14, v14, v15")
        a("s_lshl_b32 s50, s3, 3"); a("v_add_u32 v13, s50, v13")
        a("s_movk_i32 s51, 1152"); a(f"v_mul_lo_u32 v{dst}, v13, s51"); a(f"v_lshl_add_u32 v{dst}, v14, 4, v{dst}")
        a("s_lshl_b32 s53, s3, 10")
    def x1_ops(kb, vm, VX):
        def piece(j):
            a(f"s_add_u32 m0, s53, {slot1(kb) + j*4096}")
            a(f"s_add_u32 s52, s{80+kb}, {32*j*1152}")
            a(f"buffer_load_dwordx4 v{VX}, s[16:19], s52 offen lds")
            vm.issue(("X", kb))
        def extra():
            lab[0] += 1
            a("s_cmp_lg_u32 s3, 0"); a(f"s_cbranch_scc1 L_sk{lab[0]}")
            a(f"s_mov_b32 m0, {slot1(kb) + F*2048}")
            a(f"s_add_u32 s52, s{80+kb}, {288*1152}")
            a(f"buffer_load_dwordx4 v{VX}, s[16:19], s52 offen lds")
            a.label(f"L_sk{lab[0]}")
            vm.issue(("X", kb), optional=True)
        return [lambda j=j: piece(j) for j in range(F//2)] + [extra]
    if STAMP:
        a("s_memrealtime s[60:61]"); a(f"{MT} s[62:63]")
    a("s_load_dwordx4 s[4:7], s[0:1], 0")
    a("s_load_dwordx4 s[8:11], s[0:1], 16")
    a("s_load_dwordx4 s[12:15], s[0:1], 32")
    if STAMP: a(f"s_load_dwordx2 s[56:57], s[0:1], {48 if o('dbg') else 56}")
    a("s_and_b32 s40, s2, 7"); a("s_lshr_b32 s41, s2, 3")
    a("s_mul_i32 s42, s40, 63"); a("s_lshr_b32 s43, s42, 1")
    a("s_add_u32 s42, s42, 63"); a("s_lshr_b32 s42, s42, 1")
    a("s_add_u32 s43, s43, s41")
    a("s_cmp_ge_u32 s43, s42"); a("s_cbranch_scc1 L_end")
    a("s_mul_i32 s44, s43, 9363"); a("s_lshr_b32 s44, s44, 16")
    a("s_mul_i32 s45, s44, 7"); a("s_sub_u32 s45, s43, s45")
    a("v_lshrrev_b32 v1, 6, v0"); a("v_and_b32 v0, 63, v0")
    if o("rot", True):
        a("s_sub_u32 s49, s43, s41")
        a("s_mul_i32 s50, s44, 7"); a("s_max_u32 s49, s49, s50"); a("s_add_u32 s51, s50, 7"); a("s_min_u32 s51, s51, s42")
        a("s_sub_u32 s51, s51, s49")
        a("s_sub_u32 s89, s43, s49"); a("s_mul_i32 s89, s89, 9")
        a("s_movk_i32 s52, 16384"); a("s_cmp_eq_u32 s51, 7"); a("s_cselect_b32 s52, 9363, s52"); a("s_cmp_eq_u32 s51, 3"); a("s_cselect_b32 s52, 21846, s52")
        a("s_mul_i32 s89, s89, s52"); a("s_lshr_b32 s89, s89, 16")
        a("s_cmp_gt_u32 s49, s50"); a("s_addc_u32 s89, s89, s44")
        a("s_mul_i32 s49, s89, 7282"); a("s_lshr_b32 s49, s49, 16"); a("s_mul_i32 s49, s49, 9"); a("s_sub_u32 s89, s89, s49")
    else:
        a("s_mov_b32 s89, 0")
    a("s_lshl_b32 s80, s89, 7")
    a("s_mul_i32 s46, s45, %d" % (292*1152))
    a("v_readfirstlane_b32 s3, v1")
    a("s_lshl_b32 s47, s44, 9")
    a("s_mul_i32 s48, s45, %d" % (292*9216)); a("s_lshl_b32 s49, s44, 8"); a("s_add_u32 s48, s48, s49")
    a("s_cmp_ge_u32 s3, 4"); a("s_cbranch_scc0 L_compute")

    a("s_sub_u32 s3, s3, 4")
    a("s_setreg_imm32_b32 hwreg(HW_REG_MODE, 4, 2), 3")
    VX, VA, VS, VWR0, VWR1, VOR, VOS, VAR, VXL, VXW = 3, 4, 5, 6, 7, 8, 9, 21, 23, 28
    NR = o("nraw", 2)
    if NR == 2:
        RAW = [32, 64]; AF = [96, 104]; SC = 112; NZ = 116; WO = 120; VWI = 136
        preg = lambda m: 144 + 36*(m-1); STB, STN = 32, 16
    else:
        RAW = [32, 64, 96]; AF = [128, 136]; SC = 144; NZ = 148; WO = 152; VWI = 168
        preg = lambda m: 32 if m == 3 else 176 + 36*(m-1); STB, STN = 68, 15
    a("v_and_b32 v10, 31, v0"); a("v_lshrrev_b32 v11, 5, v0")
    a("s_lshl_b32 s50, s3, 1"); a("v_add_u32 v12, s50, v11")
    a("s_mov_b32 s51, %d" % (8*18432))
    a(f"v_mul_lo_u32 v{VWI}, v12, s51"); a(f"v_lshl_add_u32 v{VWI}, v10, 4, v{VWI}")
    for i in range(1, 8): a(f"v_add_u32 v{VWI+i}, {i*18432}, v{VWI}")
    a("s_waitcnt lgkmcnt(0)")
    srd(20, 6, "s47", W_BYTES)
    vm = Cnt(a, "vmcnt", 63); lg = Cnt(a, "lgkmcnt", 15)
    cur_soff = [None]
    def w_load(kb, i):
        r = RAW[kb % NR] + 4*i
        if cur_soff[0] != kb:
            a(f"s_mul_i32 s54, s{80+kb}, 9216"); cur_soff[0] = kb
        a(f"buffer_load_dwordx4 v[{r}:{r+3}], v{VWI+i}, s[20:23], s54 offen {o('wflag', 'nt')}")
        vm.issue(("W", kb))
    w_ops = lambda kb: [lambda i=i: w_load(kb, i) for i in range(8)]
    for f in w_ops(0): f()
    a("s_lshl_b32 s50, s44, 8")
    a(f"v_lshlrev_b32 v{VS}, 3, v10"); a(f"v_add_u32 v{VS}, s50, v{VS}")
    a("v_lshrrev_b32 v13, 1, v0"); a("v_and_b32 v14, 1, v0")
    a("v_add_u32 v13, s89, v13"); a("v_subrev_u32 v15, 9, v13"); a("v_min_u32 v13, v13, v15")
    a(f"v_lshlrev_b32 v{VA}, 7, v13"); a(f"v_lshl_add_u32 v{VA}, v14, 4, v{VA}")
    a("s_lshl_b32 s50, s3, 5"); a(f"v_add_u32 v{VA}, s50, v{VA}")
    xdma_voff(VX)
    for n_ in range(1, 9):
        a(f"s_add_u32 s{80+n_}, s{79+n_}, 128"); a(f"s_cmp_eq_u32 s{80+n_}, 1152"); a(f"s_cselect_b32 s{80+n_}, 0, s{80+n_}")
    srd(24, 8, None, S_BYTES); srd(28, 10, None, S_BYTES); srd(32, 12, None, A_BYTES)
    a(f"buffer_load_dwordx2 v[16:17], v{VS}, s[24:27], 0 offen"); vm.issue("C")
    a(f"buffer_load_dwordx2 v[18:19], v{VS}, s[28:31], 0 offen"); vm.issue("C")
    a(f"buffer_load_dwordx4 v[24:27], v{VA}, s[32:35], 0 offen"); vm.issue("C")
    srd(16, 4, "s46", X_BYTES)
    if XBY == "L":
        for f in x1_ops(0, vm, VX): f()
    XLA = o("xla", 1)
    if NR == 2:
        for f in w_ops(1)[:PRE]: f()
    else:
        for f in w_ops(1)[:PRE]: f()
    srd(36, 14, "s48", O_BYTES)
    a("s_and_b32 s55, s3, 1"); a("s_lshl_b32 s55, s55, 10")
    a("s_lshr_b32 s50, s3, 1"); a("s_mul_i32 s50, s50, 18432"); a("s_add_u32 s55, s55, s50")
    a("v_lshrrev_b32 v13, 3, v10"); a("v_lshlrev_b32 v13, 12, v13")
    a("v_and_b32 v14, 1, v10"); a("v_lshl_add_u32 v13, v14, 10, v13")
    a("v_and_b32 v15, 6, v10"); a("v_add_u32 v15, v15, v14")
    a("s_and_b32 s50, s3, 1"); a("s_lshl_b32 s50, s50, 1"); a("v_add_u32 v20, s50, v11")
    a("v_lshl_add_u32 v15, v20, 4, v15"); a("v_lshl_add_u32 v13, v15, 4, v13")
    a("s_lshr_b32 s50, s3, 1"); a("s_lshl_b32 s50, s50, 11")
    a(f"v_add_u32 v{VWR0}, s50, v13"); a(f"v_xor_b32 v{VWR1}, 16, v{VWR0}")
    a("v_lshrrev_b32 v13, 4, v0"); a("s_lshl_b32 s50, s3, 2"); a("v_add_u32 v13, s50, v13")
    a("v_and_b32 v14, 15, v0"); a("v_and_b32 v15, 7, v13"); a("v_xor_b32 v15, v15, v14")
    a(f"v_lshlrev_b32 v{VOR}, 8, v13"); a(f"v_lshl_add_u32 v{VOR}, v15, 4, v{VOR}")
    a("s_movk_i32 s51, 9216"); a(f"v_mul_lo_u32 v{VOS}, v13, s51"); a(f"v_lshl_add_u32 v{VOS}, v14, 4, v{VOS}")
    a(f"s_add_u32 s50, s53, {ATAB}")
    a("v_min_u32 v22, 31, v0"); a("v_lshlrev_b32 v22, 5, v22"); a("v_add_u32 v22, s50, v22")
    a(f"v_lshlrev_b32 v{VAR}, 5, v11"); a(f"v_add_u32 v{VAR}, s50, v{VAR}")
    vm.wait("C")
    for i in range(4):
        a(f"v_lshlrev_b32 v{AF[0]+2*i}, 16, v{24+i}"); a(f"v_and_b32 v{AF[0]+2*i+1}, 0xffff0000, v{24+i}")
    a("s_mov_b32 s50, 0x58000000")
    for i in range(8): a(f"v_mul_f32 v{AF[0]+i}, s50, v{AF[0]+i}")
    a(f"ds_write_b128 v22, v[{AF[0]}:{AF[0]+3}]"); a(f"ds_write_b128 v22, v[{AF[0]+4}:{AF[0]+7}] offset:16")
    for i in range(2):
        a(f"v_lshlrev_b32 v{SC+2*i}, 16, v{16+i}"); a(f"v_and_b32 v{SC+2*i+1}, 0xffff0000, v{16+i}")
        a(f"v_lshlrev_b32 v{NZ+2*i}, 16, v{18+i}"); a(f"v_and_b32 v{NZ+2*i+1}, 0xffff0000, v{18+i}")
    a("s_mov_b32 s50, 0xa7000000")
    a("s_mov_b32 s51, 0x71800000")
    for e in range(4):
        a(f"v_mul_f32 v{NZ+e}, v{NZ+e}, v{SC+e}"); a(f"v_mul_f32 v{NZ+e}, s50, v{NZ+e}"); a(f"v_mul_f32 v{SC+e}, s51, v{SC+e}")
    a("s_waitcnt lgkmcnt(0)")
    def a_read(kb):
        r = AF[kb & 1]
        a(f"ds_read_b128 v[{r}:{r+3}], v{VAR} offset:{kb*64}"); a(f"ds_read_b128 v[{r+4}:{r+7}], v{VAR} offset:{kb*64+16}")
        lg.issue("a"); lg.issue("a")
    a_read(0)
    def convert(kb, fillers):
        R = RAW[kb % NR]; A = AF[kb & 1]
        steps = []
        def wr(e):
            a(f"ds_write_b128 v{VWR1 if e & 1 else VWR0}, v[{WO+4*e}:{WO+4*e+3}] offset:{(kb&1)*16384 + (e>>1)*128}"); lg.issue("w")
        for e in range(4):
            for hf in range(2):
                def st(e=e, hf=hf):
                    if o("noconv"):
                        if hf == 1 and WRM == "spread": wr(e)
                        return
                    for i in range(4*hf, 4*hf+4): a(f"v_fma_f32 v{R+4*i+e}, v{R+4*i+e}, v{SC+e}, v{NZ+e}")
                    for i in range(4*hf, 4*hf+4): a(f"v_mul_f32 v{R+4*i+e}, v{R+4*i+e}, v{A+i}")
                    for m in (2*hf, 2*hf+1): a(f"v_cvt_pk_bf16_f32 v{WO+4*e+m}, v{R+8*m+e}, v{R+8*m+4+e}")
                    if hf == 1 and WRM == "spread": wr(e)
                steps.append(st)
        vm.wait(("W", kb))
        stamp(LS, f"w{kb}")
        lg.wait("a")
        if kb < 8: a_read(kb+1)
        nf, ns = len(fillers), len(steps); fi = 0
        for si, s in enumerate(steps):
            s()
            while fi < min(nf, (si+1)*nf//ns + (1 if nf else 0)):
                fillers[fi](); fi += 1
        while fi < nf:
            fillers[fi](); fi += 1
        if WRM != "spread":
            for e in range(4): wr(e)
    def p0_ops(m=0):
        def piece(kb):
            a(f"s_add_u32 m0, s55, {pslot(m) + kb*2048}")
            a(f"s_add_u32 s52, s{80+kb}, {(16*(F+2*m))*1152}")
            a(f"buffer_load_dwordx4 v{VX}, s[16:19], s52 offen lds")
            vm.issue(("P", m))
        return [lambda kb=kb: piece(kb) for kb in range(9)]
    def preg_ops(m):
        def piece(kb):
            if kb == 0: a(f"s_mov_b32 s54, {(16*(F+2*m))*1152}")
            r = preg(m) + 4*kb
            a(f"buffer_load_dwordx4 v[{r}:{r+3}], v{VX}, s[16:19], s54 offen offset:{kb*128}")
            vm.issue(("P", m))
        return [lambda kb=kb: piece(kb) for kb in range(9)]
    def pwrite(m, inter=None):
        vm.wait(("P", m))
        if o("nopw"): return
        for kb in range(9):
            r = preg(m) + 4*kb
            a(f"ds_write_b128 v{VXW if m & 1 else VXW+1}, v[{r}:{r+3}] offset:{kb*2048}"); lg.issue("px")
            if inter: inter.pop(0)()
            elif o("pwpace", True): lg.wait_all()
    stq = []; stn = [0]
    def fetch_tiles(lst):
        for (slot, row0, half) in lst:
            r = STB + 4*(stn[0] % STN); stn[0] += 1
            a(f"ds_read_b128 v[{r}:{r+3}], v{VOR} offset:{slot*4096}"); lg.issue(("o", r))
            stq.append((r, row0, half))
    def do_stores(n):
        for _ in range(min(n, len(stq))):
            r, row0, half = stq.pop(0)
            lg.wait(("o", r))
            if o("nost"): continue
            if half:
                lab[0] += 1
                a("s_cmp_eq_u32 s45, 6"); a("s_cselect_b32 s50, 2, 1"); a("s_cmp_ge_u32 s3, s50"); a(f"s_cbranch_scc1 L_sk{lab[0]}")
            a(f"s_mov_b32 s52, {row0*9216}")
            a(f"buffer_store_dwordx4 v[{r}:{r+3}], v{VOS}, s[36:39], s52 offen {STFLAG}")
            if half: a.label(f"L_sk{lab[0]}")
            vm.issue("S", optional=half)
    def bar(n):
        stamp(LS, f"a{n}")
        keep = [t for t in lg.ops]
        if lg.ops: lg.wait_all()
        a("s_barrier")
        stamp(LS, f"b{n}")
    def mix(l1, l2):
        r = []; i = j = 0
        while i < len(l1) or j < len(l2):
            if j >= len(l2) or (i < len(l1) and i*len(l2) <= j*len(l1)): r.append(l1[i]); i += 1
            else: r.append(l2[j]); j += 1
        return r
    stamp(LS, "s")
    p0 = p0_ops()
    for n in range(9):
        fill = []
        if NR == 2:
            if n < 8:
                fill = w_ops(n+1)[PRE:]
                if XBY == "L": fill = mix(x1_ops(n+1, vm, VX), fill)
        else:
            if n < 7: fill = w_ops(n+2)
            elif n == 7: fill = p0
            if n == 0: fill = w_ops(1)[PRE:] + fill
            if XBY == "L" and n + XLA <= 8:
                assert XLA == 1
                fill = mix(x1_ops(n+XLA, vm, VX), fill)
        post = []
        if n == 0 and o("c0first", False): post, fill = fill, []
        convert(n, fill)
        stamp(LS, f"c{n}")
        if XBY == "L": vm.wait(("X", n))
        bar(n)
        for f in post: f()
        if NR == 2:
            if n < 7:
                for f in w_ops(n+2)[:PRE]: f()
            elif n == 7:
                for f in p0: f()
    for f in p0_ops(1): f()
    vm.wait(("P", 0)); bar(9)
    SP = o("sp", [5, 5, 4, 3])
    p1t = lambda st_: [(p1_out[t], trow(t), t == F) for t in p1_order if wstage[t] == st_]
    for f in p0_ops(2): f()
    fetch_tiles(p1t(8))
    do_stores(SP[0])
    vm.wait(("P", 1)); bar(10)
    for f in p0_ops(3): f()
    fetch_tiles(p1t(9) + [(p2slot(0, 0), prow(0, 0), False)])
    do_stores(SP[1])
    vm.wait(("P", 2)); bar(11)
    fetch_tiles(p1t(10) + [(p2slot(0, 1), prow(0, 1), False), (p2slot(1, 0), prow(1, 0), False)])
    do_stores(SP[2])
    vm.wait(("P", 3)); bar(12)
    fetch_tiles([(p2slot(1, 1), prow(1, 1), False), (p2slot(2, 0), prow(2, 0), False)])
    do_stores(SP[3]); bar(13)
    fetch_tiles([(p2slot(2, 1), prow(2, 1), False), (p2slot(3, 0), prow(3, 0), False)])
    do_stores(99)
    if STAMP:
        a("s_waitcnt vmcnt(0)"); a("s_add_u32 s3, s3, 4"); a("s_branch L_stamp")
    else:
        a("s_endpgm")

    a.label("L_compute")
    assert XBY == "L"
    if o("cpf", True):
        a("s_getpc_b64 s[50:51]")
        a.label("L_pc")
        a(f"s_sub_u32 s50, s50, L_pc-{NAME}_kernel"); a("s_subb_u32 s51, s51, 0")
        a("s_lshl_b32 s52, s41, 2"); a("s_add_u32 s52, s52, s3"); a("s_mul_i32 s52, s52, CPL*64")
        a("v_lshlrev_b32 v4, 6, v0"); a("v_add_u32 v4, s52, v4")
        a(f"v_min_u32 v4, L_end-{NAME}_kernel, v4")
        a("v_cmp_gt_u32 vcc, CPL, v0"); a("s_and_saveexec_b64 s[52:53], vcc")
        a("global_load_dword v255, v4, s[50:51]")
        a("s_mov_b64 exec, s[52:53]")
    WP = 112; ACC = 24; FR1 = [8, 12, 16, 20]
    AC0, AC1, B0, B1, VO, CVX = 2, 3, 4, 5, 6, 7
    if XBY == "C":
        xdma_voff(CVX)
    a("v_and_b32 v10, 15, v0"); a("v_lshrrev_b32 v11, 4, v0")
    vc = Cnt(a, "vmcnt", 63)
    if XBY == "C":
        a("s_waitcnt lgkmcnt(0)")
        srd(16, 4, "s46", X_BYTES)
        for f in x1_ops(0, vc, CVX): f()
        for f in x1_ops(1, vc, CVX): f()
    a("v_lshrrev_b32 v12, 1, v10"); a("v_xor_b32 v12, v12, v11")
    a(f"v_lshlrev_b32 v{AC0}, 7, v10"); a(f"v_lshl_add_u32 v{AC0}, v12, 4, v{AC0}")
    a(f"v_add_u32 v{AC0}, {slot1(0)}, v{AC0}"); a(f"v_xor_b32 v{AC1}, 64, v{AC0}")
    a("v_and_b32 v12, 2, v10"); a("v_lshlrev_b32 v12, 2, v12")
    a("v_lshrrev_b32 v13, 2, v10"); a("v_lshl_add_u32 v12, v13, 1, v12")
    a("v_and_b32 v13, 1, v10"); a("v_add_u32 v12, v12, v13")
    a("v_lshl_add_u32 v12, v11, 4, v12")
    a("s_lshl_b32 s50, s3, 12")
    a(f"v_lshlrev_b32 v{B0}, 4, v12"); a(f"v_add_u32 v{B0}, s50, v{B0}"); a(f"v_xor_b32 v{B1}, 16, v{B0}")
    a("s_lshl_b32 s50, s3, 2"); a("v_add_u32 v12, s50, v11")
    a("v_and_b32 v13, 7, v10"); a("v_xor_b32 v12, v12, v13")
    a(f"v_lshlrev_b32 v{VO}, 8, v10"); a(f"v_lshl_add_u32 v{VO}, v12, 4, v{VO}")
    a("s_movk_i32 s51, 9216"); a("v_mul_lo_u32 v1, v10, s51"); a("v_lshl_add_u32 v1, v11, 4, v1")
    a("s_lshl_b32 s50, s3, 6"); a("v_add_u32 v1, s50, v1")
    a("s_waitcnt lgkmcnt(0)")
    srd(36, 14, "s48", O_BYTES)
    lc = Cnt(a, "lgkmcnt", 15)
    wreg = lambda ks, c: WP + 8*ks + 4*c
    def mfma1(acc, ks, c, fr, first):
        src = "0" if first else f"v[{acc+4*c}:{acc+4*c+3}]"
        a(f"v_mfma_f32_16x16x32_bf16 v[{acc+4*c}:{acc+4*c+3}], v[{wreg(ks,c)}:{wreg(ks,c)+3}], v[{fr}:{fr+3}], {src}")
    cvt1 = lambda acc, m: a(f"v_cvt_pk_bf16_f32 v{acc+m}, v{acc+2*m}, v{acc+2*m+1}")
    a("s_mov_b32 s90, 0x00ff00ff"); a("s_mov_b32 s91, 0x00ff00ff")
    def epi_wr(acc, slot, half=False, areg=VO):
        if half: a("s_mov_b64 exec, s[90:91]")
        a(f"ds_write_b128 v{areg}, v[{acc}:{acc+3}] offset:{slot*4096}"); lc.issue("ow")
        if half: a("s_mov_b64 exec, -1")
    def epi_ops(acc, slot, half=False, areg=VO):
        return [lambda m=m: cvt1(acc, m) for m in range(4)] + [lambda: epi_wr(acc, slot, half, areg)]
    a("s_waitcnt vmcnt(0)")
    H1 = o("h1", 3)
    EXT = [wreg(16, 0), wreg(16, 1), wreg(17, 0), wreg(17, 1)]
    tiles = early + late
    nj = 2*len(tiles)
    def bufs(kb):
        if kb < 7: seq = [(FR1 + EXT)[(kb*nj + j) % 8] for j in range(nj)]
        elif kb == 7:
            seq = []
            for j in range(nj):
                if j < nj - 8: seq.append((FR1 + EXT)[(kb*nj + j) % 8])
                else: seq.append(None)
            prev = seq[nj-16:nj-8]
            e = [r for r in prev if r in EXT]; f = [r for r in prev if r in FR1]
            seq[nj-8:] = e + f
        else:
            last = bufs(7)[-4:]
            seq = [last[j % 4] for j in range(nj)]
        return seq
    held = []
    free_at = {}
    done = [-1]
    for kb in range(9):
        stamp(CS, f"a{kb}")
        a("s_barrier")
        stamp(CS, f"b{kb}")
        xo = x1_ops(kb+2, vc, CVX) if (XBY == "C" and kb+2 <= 8) else []
        jobs = [(t, s) for t in tiles for s in range(2)]
        bf = bufs(kb)
        nxt = [0]
        def rd():
            j = nxt[0]
            if j >= nj: return False
            fr = bf[j]
            if free_at.get(fr, -1) > done[0]: return False
            if j - (done[0] + 1 - kb*nj) >= o("dist", 6): return False
            t, s = jobs[j]
            a(f"ds_read_b128 v[{fr}:{fr+3}], v{AC1 if s else AC0} offset:{t*2048}"); lc.issue(("a", kb, j))
            free_at[fr] = kb*nj + j; nxt[0] += 1
            return True
        wq = [(s, c) for s in range(2) for c in range(2)]
        def wrd():
            s, c = wq.pop(0); r = wreg(2*kb+s, c)
            a(f"ds_read_b128 v[{r}:{r+3}], v{B1 if c else B0} offset:{(kb&1)*16384 + s*2048 + c*1024}"); lc.issue(("w", kb, s))
        wrd(); wrd(); rd()
        for (job, fr, gj) in held:
            job(fr, 0)
            if wq: wrd()
            else: rd()
            job(fr, 1); done[0] = gj
            if wq: wrd()
            else: rd()
        while wq: wrd()
        while rd(): pass
        if XPOS == "start":
            while xo: xo.pop(0)()
        fillq = []
        for j in range(nj - H1):
            t, s = jobs[j]
            assert nxt[0] > j
            if j % o("we1", 2) == 0 or kb == 8: lc.wait([("a", kb, min(j + (o("we1", 2)-1 if kb < 8 else 0), nxt[0]-1)), ("w", kb, 1 if kb < 8 else s)])
            sk = o("nomf") and kb < 8
            if not sk: mfma1(ACC + 8*t, 2*kb+s, 0, bf[j], kb == 0 and s == 0)
            rd()
            if not sk: mfma1(ACC + 8*t, 2*kb+s, 1, bf[j], kb == 0 and s == 0)
            done[0] = kb*nj + j
            if nxt[0] - j - 1 < o("dist", 6) - 1 and kb != 8: rd()
            if XPOS == "spread" and xo and j % 3 == 1: xo.pop(0)()
            if kb == 8:
                if j >= 5 and j % 2 == 1 and wstage[jobs[j-4][0]] == 8:
                    tt = jobs[j-4][0]
                    fillq += epi_ops(ACC + 8*tt, p1_out[tt], half=(tt == F))
                for _ in range(o("e8", 2)):
                    if fillq: fillq.pop(0)()
        while rd(): pass
        assert nxt[0] == nj, (kb, nxt[0])
        while fillq: fillq.pop(0)()
        while xo: xo.pop(0)()
        nb = slot1(kb+1) if kb < 8 else pslot(0)
        d = nb - slot1(kb)
        lc.wait_all()
        op = "v_add_u32" if d >= 0 else "v_subrev_u32"
        a(f"{op} v{AC0}, {abs(d)}, v{AC0}"); a(f"{op} v{AC1}, {abs(d)}, v{AC1}")
        if XBY == "C" and kb < 8: vc.wait(("X", kb+1))
        held = [((lambda fr, c, t=jobs[j][0], s=jobs[j][1], kb=kb: mfma1(ACC + 8*t, 2*kb+s, c, fr, kb == 0 and s == 0)), bf[j], kb*nj + j) for j in range(nj-H1, nj)]
    held = [(job, fr) for (job, fr, gj) in held]
    assert H1 == 3
    XACC, YACC = ACC, ACC + 8
    NB = 9; HOLD = 3; WE = o("we", 3)
    heldregs = [fr for (_, fr) in held]
    ring = [r for r in FR1 if r not in heldregs] + [ACC+16, ACC+20, ACC+24, ACC+28, ACC+32] + heldregs
    def pair_body(pi):
        nonlocal held
        jobs = [(b, ks) for b in range(2) for ks in range(18)]
        def rd(j):
            b, ks = jobs[j]; fr = ring[j % NB]
            a(f"ds_read_b128 v[{fr}:{fr+3}], v{AC1 if ks & 1 else AC0} offset:{b*18432 + (ks>>1)*2048}"); lc.issue(("p", j))
        pre = NB - HOLD
        hm_ = [(job, fr, c) for (job, fr) in held for c in range(2)]
        rd(0); rd(1); nxt = 2
        for (job, fr, c) in hm_:
            job(fr, c)
            if nxt < pre: rd(nxt); nxt += 1
        fillq = []
        for j in range(36 - HOLD):
            b, ks = jobs[j]
            if j % WE == 0: lc.wait(("p", min(j + WE - 1, 35)))
            acc = YACC if b else XACC
            mfma1(acc, ks, 0, ring[j % NB], ks == 0)
            if nxt < 36 and nxt - NB < j: rd(nxt); nxt += 1
            mfma1(acc, ks, 1, ring[j % NB], ks == 0)
            if o("deep", True) and nxt < 36 and nxt - NB <= j and nxt - j - 1 < NB - 1 and not fillq: rd(nxt); nxt += 1
            if j == 2:
                if pi > 0: fillq += epi_ops(YACC, 0, areg=B1)
                if pi < 2:
                    for tt in p1_order:
                        if wstage[tt] == 9 + pi: fillq += epi_ops(ACC + 8*tt, p1_out[tt], half=(tt == F))
            if j == 22: fillq += epi_ops(XACC, 0, areg=B0)
            if fillq:
                f_ = fillq.pop(0)
                if not o("noepi"): f_()
                if len(fillq) > 32 - HOLD - j + 3: fillq.pop(0)()
        assert not fillq and nxt == 36, (len(fillq), nxt)
        lc.wait_all()
        held = [((lambda fr, c, ks=jobs[j][1]: mfma1(YACC, ks, c, fr, False)), ring[j % NB]) for j in range(36-HOLD, 36)]
    a(f"v_add_u32 v{B0}, {8*4096}, v{VO}")
    stamp(CS, "a9")
    a("s_barrier")
    stamp(CS, "b9")
    pair_body(0)
    stamp(CS, "a10")
    a(f"s_mov_b32 s80, {(-2*PSTR) & 0xffffffff}")
    def adv():
        a(f"v_add_u32 v{AC0}, s80, v{AC0}"); a(f"v_add_u32 v{AC1}, s80, v{AC1}")
        a(f"s_mov_b32 s80, {PSTR}")
        a(f"v_add_u32 v{B1}, 4096, v{B0}"); a(f"v_xor_b32 v{B0}, 8192, v{B0}")
    peel1 = any(v == 10 for v in wstage.values()) or o("unroll")
    if peel1:
        adv(); a("s_barrier"); stamp(CS, "b10"); pair_body(1); stamp(CS, "a11")
    if o("unroll"):
        for it in (2, 3):
            adv(); a("s_barrier"); stamp(CS, f"b{9+it}"); pair_body(it); stamp(CS, f"a{10+it}")
    else:
        a(f"s_mov_b32 s82, {2 if peel1 else 1}")
        a.label("L_p2")
        adv(); a("s_barrier"); lc.ops = []
        pair_body(2)
        a("s_add_u32 s82, s82, 1"); a(f"s_cmp_lt_u32 s82, {NP}"); a("s_cbranch_scc1 L_p2")
    a("s_barrier")
    stamp(CS, "b13")
    for (job, fr) in held:
        job(fr, 0); job(fr, 1)
    a(f"s_mov_b32 s52, {prow(NP-1, 1)*9216}")
    a("s_nop 6")
    for m in range(4): cvt1(YACC, m)
    a(f"buffer_store_dwordx4 v[{YACC}:{YACC+3}], v1, s[36:39], s52 offen {STFLAG}")
    if STAMP:
        a("s_waitcnt vmcnt(0)")
        a.label("L_stamp")
        a("s_memrealtime s[58:59]"); a(f"{MT} s[94:95]")
        a("s_getreg_b32 s96, hwreg(HW_REG_XCC_ID)"); a("s_getreg_b32 s97, hwreg(HW_REG_HW_ID)")
        a("s_waitcnt lgkmcnt(0)")
        if o("spin"):
            K_, wg_ = o("spin")
            a(f"s_cmp_lg_u32 s2, {wg_}"); a("s_cbranch_scc1 L_end")
            a("s_cmp_lg_u32 s3, 1"); a("s_cbranch_scc1 L_end")
            src = "s64" if CS else "s94"
            a(f"s_sub_u32 s98, {src}, s62"); a(f"s_mul_i32 s98, s98, {K_}"); a("s_min_u32 s98, s98, 20000")
            a.label("L_spin")
            a("s_memrealtime s[58:59]"); a("s_waitcnt lgkmcnt(0)")
            a("s_sub_u32 s99, s58, s62"); a("s_cmp_lt_u32 s99, s98"); a("s_cbranch_scc1 L_spin")
        elif o("dbg"):
            a("s_mov_b32 s84, s56"); a("s_and_b32 s85, s57, 0xffff"); a("s_mov_b32 s86, 256"); a("s_mov_b32 s87, 0x20000")
            a("s_not_b32 s98, s60")
            a("v_mov_b32 v1, s58"); a("v_mov_b32 v2, s98"); a("v_cmp_eq_u32 vcc, 1, v0"); a("s_nop 1"); a("v_cndmask_b32 v1, v1, v2, vcc")
            a("v_mov_b32 v2, s60"); a("v_cmp_eq_u32 vcc, 2, v0"); a("s_nop 1"); a("v_cndmask_b32 v1, v1, v2, vcc")
            a("v_lshlrev_b32 v2, 2, v0"); a("v_cmp_gt_u32 vcc, 3, v0"); a("s_and_saveexec_b64 s[100:101], vcc")
            a("buffer_atomic_umax v1, v2, s[84:87], 0 offen")
            a("s_mov_b64 exec, s[100:101]")
            a(f"s_cmp_lg_u32 s2, {o('dbg')}"); a("s_cbranch_scc1 L_end")
            a("s_and_b32 s99, s3, 3"); a("s_cmp_lg_u32 s99, 1"); a("s_cbranch_scc1 L_end")
            a("v_mov_b32 v1, 0")
            for i in range(8):
                src = f"s{64+2*i}" if i < 7 else "s94"
                a(f"s_sub_u32 s99, {src}, s62"); a(f"v_mov_b32 v2, s99"); a(f"v_cmp_eq_u32 vcc, {i}, v0"); a("s_nop 1"); a("v_cndmask_b32 v1, v1, v2, vcc")
            a("s_cmp_ge_u32 s3, 4"); a("s_cselect_b32 s98, 44, 12"); a("s_cselect_b32 s99, 5, 8")
            a("v_lshlrev_b32 v2, 2, v0"); a("v_cmp_gt_u32 vcc, s99, v0"); a("s_and_saveexec_b64 s[100:101], vcc")
            a("buffer_store_dword v1, v2, s[84:87], s98 offen"); a("s_waitcnt vmcnt(0)")
        else:
            a("s_mov_b32 s84, s56"); a("s_and_b32 s85, s57, 0xffff"); a("s_mov_b32 s86, 0x100000"); a("s_mov_b32 s87, 0x20000")
            a("s_lshl_b32 s98, s2, 3"); a("s_add_u32 s98, s98, s3"); a("s_lshl_b32 s98, s98, 6")
            vals = ["s60", "s58", "s62", "s94"] + [f"s{64+2*i}" for i in range(8)] + ["0", "0x5a5a1234", "s97", "s96"]
            a("v_mov_b32 v1, 0")
            for i, v in enumerate(vals):
                a(f"v_mov_b32 v2, {v}"); a(f"v_cmp_eq_u32 vcc, {i}, v0"); a("s_nop 1"); a("v_cndmask_b32 v1, v1, v2, vcc")
            a("v_lshlrev_b32 v2, 2, v0"); a("v_cmp_gt_u32 vcc, 16, v0"); a("s_and_saveexec_b64 s[100:101], vcc")
            a("buffer_store_dword v1, v2, s[84:87], s98 offen"); a("s_waitcnt vmcnt(0)")
    a.label("L_end")
    a(f".set CPL, (L_end-{NAME}_kernel+8191)/8192")
    open(out, "w").write(wrap(a.text(), (256,1,1), 512, LDS, 256, 102, 256))

def st(*keys): return {k: i for i, k in enumerate(keys)}
STD = dict(stamp=True, rt=True, cs=st("b0", "b4", "b8", "a9", "b9", "a10", "b13"), ls=st("s", "a0", "a4", "a8", "a9", "a10", "a11", "a12"))
if __name__ == "__main__":
    B = dict(nraw=3, xby="L", wr="spread")
    F2 = dict(B, stamp=True, rt=True, unroll=True, cs=st("b0", "b4", "b8", "b9", "b10", "b11", "b12", "b13"), ls=st("s", "a8", "a9", "a10", "a11", "a12", "a13"))
    gen("v8.s", B)
    gen("v8a.s", dict(F2))
    gen("v8b.s", dict(F2, cpf=False))
    gen("v8c.s", dict(F2, wflag=""))
    gen("v8d.s", dict(F2, rot=False, wflag=""))
    gen("v8e.s", dict(F2, c0first=True))
    gen("v8f.s", dict(F2, wr="end"))
    gen("h8a.s", dict(B, rot=False, wflag=""))
    gen("h8b.s", dict(B, rot=True, wflag=""))
    gen("h8c.s", dict(B, rot=False, wflag="nt"))
    gen("h8d.s", dict(B, rot=False, wflag="", cpf=False))
    gen("h8e.s", dict(B, rot=False, wflag="", stflag=""))
    gen("h8f.s", dict(B, rot=False, wflag="", stflag="nt"))
    S = dict(B, rot=False, wflag="", stamp=True, rt=True)
    gen("sp_a.s", dict(S, cs=st("b8"), spin=(4, 133)))
    gen("sp_b.s", dict(S, cs=st("b8"), spin=(8, 133)))
    gen("sp_c.s", dict(S, cs=st("b0"), spin=(16, 133)))
    gen("sp_d.s", dict(S, cs=st("b0"), spin=(32, 133)))
    gen("sp_e.s", dict(S, spin=(3, 133)))
    gen("sp_f.s", dict(S, spin=(6, 133)))
```

```python
import sys
from common import *
from gen_v1 import Cnt

def gen(out, opts):
    o = lambda k, d=None: opts.get(k, d)
    STAMP = o("stamp", False); STFLAG = o("stflag", "sc1")
    MT = "s_memrealtime" if o("rt") else "s_memtime"
    XBY = o("xby", "C"); XPOS = o("xpos", "start"); WRM = o("wr", "end"); PRE = o("pre", 4)
    LS = o("ls", {}); CS = o("cs", {})
    a = Asm()
    F = 10; NP = 4
    XBASE = 12*4096; S1 = 21504
    slot1 = lambda u: XBASE + (u % 3)*S1
    PSTR = 38912
    pslot = lambda m: XBASE + ((m+2) % 3)*PSTR
    LDS = 163840
    p2slot = lambda m, b: 8 + (2*m + b) % 4
    ATAB = 8*4096
    E8 = o("e8n", 5)
    p1_order = [0, 1, 2, 3, 4, F, 5, 6, 7, 8, 9]
    wstage = {}
    for n_, t_ in enumerate(p1_order):
        wstage[t_] = 8 if n_ < E8 else (9 if n_ < E8 + o("e9n", 5) else 10)
    free8 = [4, 5, 6, 7, 9, 10]; free9 = [0, 1, 2, 3, 11]
    p1_out = {}
    for t_ in p1_order:
        if wstage[t_] == 8: p1_out[t_] = free8.pop(0)
    rest = free9 + [x for x in free8 if x >= 12]
    for t_ in p1_order:
        if wstage[t_] == 9: p1_out[t_] = rest.pop(0)
    for t_ in p1_order:
        if wstage[t_] == 9: assert p1_out[t_] not in (9, 10), p1_out
        if wstage[t_] == 10: p1_out[t_] = [x for x in (4, 5, 6, 7) if x not in [p1_out[u] for u in p1_out if wstage[u] >= 9]][0]
    early = p1_order; late = []
    trow = lambda t: 288 if t == F else 16*t
    prow = lambda m, b: 16*(F + 2*m + b)
    lab = [0]
    def stamp(tab, key):
        if STAMP and key in tab: a(f"{MT} s[{64+2*tab[key]}:{65+2*tab[key]}]")
    def srd(d, lo, off, size):
        if off is None:
            a(f"s_mov_b32 s{d}, s{lo}"); a(f"s_and_b32 s{d+1}, s{lo+1}, 0xffff"); a(f"s_mov_b32 s{d+2}, {size}")
        else:
            a(f"s_add_u32 s{d}, s{lo}, {off}"); a(f"s_addc_u32 s{d+1}, s{lo+1}, 0"); a(f"s_and_b32 s{d+1}, s{d+1}, 0xffff")
            a(f"s_sub_u32 s{d+2}, {size}, {off}")
        a(f"s_mov_b32 s{d+3}, 0x20000")
    def xdma_voff(dst):
        a("v_lshrrev_b32 v13, 3, v0")
        a("s_and_b32 s50, s3, 1"); a("s_lshl_b32 s50, s50, 2")
        a("v_lshrrev_b32 v14, 1, v13"); a("v_add_u32 v14, s50, v14")
        a("v_and_b32 v15, 7, v0"); a("v_xor_b32 v14, v14, v15")
        a("s_lshl_b32 s50, s3, 3"); a("v_add_u32 v13, s50, v13")
        a("s_movk_i32 s51, 1152"); a(f"v_mul_lo_u32 v{dst}, v13, s51"); a(f"v_lshl_add_u32 v{dst}, v14, 4, v{dst}")
        a("s_lshl_b32 s53, s3, 10")
    def x1_ops(kb, vm, VX):
        def piece(j):
            a(f"s_add_u32 m0, s53, {slot1(kb) + j*4096}")
            a(f"s_add_u32 s52, s{80+kb}, {32*j*1152}")
            a(f"buffer_load_dwordx4 v{VX}, s[16:19], s52 offen lds")
            vm.issue(("X", kb))
        def extra():
            lab[0] += 1
            a("s_cmp_lg_u32 s3, 0"); a(f"s_cbranch_scc1 L_sk{lab[0]}")
            a(f"s_mov_b32 m0, {slot1(kb) + F*2048}")
            a(f"s_add_u32 s52, s{80+kb}, {288*1152}")
            a(f"buffer_load_dwordx4 v{VX}, s[16:19], s52 offen lds")
            a.label(f"L_sk{lab[0]}")
            vm.issue(("X", kb), optional=True)
        return [lambda j=j: piece(j) for j in range(F//2)] + [extra]
    if STAMP:
        a("s_memrealtime s[60:61]"); a(f"{MT} s[62:63]")
    a("s_load_dwordx4 s[4:7], s[0:1], 0")
    a("s_load_dwordx4 s[8:11], s[0:1], 16")
    a("s_load_dwordx4 s[12:15], s[0:1], 32")
    if STAMP: a(f"s_load_dwordx2 s[56:57], s[0:1], {48 if o('dbg') else 56}")
    a("s_and_b32 s40, s2, 7"); a("s_lshr_b32 s41, s2, 3")
    a("s_mul_i32 s42, s40, 63"); a("s_lshr_b32 s43, s42, 1")
    a("s_add_u32 s42, s42, 63"); a("s_lshr_b32 s42, s42, 1")
    a("s_add_u32 s43, s43, s41")
    a("s_cmp_ge_u32 s43, s42"); a("s_cbranch_scc1 L_end")
    a("s_mul_i32 s44, s43, 9363"); a("s_lshr_b32 s44, s44, 16")
    a("s_mul_i32 s45, s44, 7"); a("s_sub_u32 s45, s43, s45")
    a("v_lshrrev_b32 v1, 6, v0"); a("v_and_b32 v0, 63, v0")
    if o("rot", True):
        a("s_sub_u32 s49, s43, s41")
        a("s_mul_i32 s50, s44, 7"); a("s_max_u32 s49, s49, s50"); a("s_add_u32 s51, s50, 7"); a("s_min_u32 s51, s51, s42")
        a("s_sub_u32 s51, s51, s49")
        a("s_sub_u32 s89, s43, s49"); a("s_mul_i32 s89, s89, 9")
        a("s_movk_i32 s52, 16384"); a("s_cmp_eq_u32 s51, 7"); a("s_cselect_b32 s52, 9363, s52"); a("s_cmp_eq_u32 s51, 3"); a("s_cselect_b32 s52, 21846, s52")
        a("s_mul_i32 s89, s89, s52"); a("s_lshr_b32 s89, s89, 16")
        a("s_cmp_gt_u32 s49, s50"); a("s_addc_u32 s89, s89, s44")
        a("s_mul_i32 s49, s89, 7282"); a("s_lshr_b32 s49, s49, 16"); a("s_mul_i32 s49, s49, 9"); a("s_sub_u32 s89, s89, s49")
    else:
        a("s_mov_b32 s89, 0")
    a("s_lshl_b32 s80, s89, 7")
    a("s_mul_i32 s46, s45, %d" % (292*1152))
    a("v_readfirstlane_b32 s3, v1")
    a("s_lshl_b32 s47, s44, 9")
    a("s_mul_i32 s48, s45, %d" % (292*9216)); a("s_lshl_b32 s49, s44, 8"); a("s_add_u32 s48, s48, s49")
    a("s_cmp_ge_u32 s3, 4"); a("s_cbranch_scc0 L_compute")

    a("s_sub_u32 s3, s3, 4")
    a("s_setreg_imm32_b32 hwreg(HW_REG_MODE, 4, 2), 3")
    VX, VA, VS, VWR0, VWR1, VOR, VOS, VAR, VXL, VXW = 3, 4, 5, 6, 7, 8, 9, 21, 23, 28
    NR = o("nraw", 2)
    if NR == 2:
        RAW = [32, 64]; AF = [96, 104]; SC = 112; NZ = 116; WO = 120; VWI = 136
        preg = lambda m: 144 + 36*(m-1); STB, STN = 32, 16
    else:
        RAW = [32, 64, 96]; AF = [128, 136]; SC = 144; NZ = 148; WO = 152; VWI = 168
        preg = lambda m: 32 if m == 3 else 176 + 36*(m-1); STB, STN = 68, 15
    a("v_and_b32 v10, 31, v0"); a("v_lshrrev_b32 v11, 5, v0")
    a("s_lshl_b32 s50, s3, 1"); a("v_add_u32 v12, s50, v11")
    a("s_mov_b32 s51, %d" % (8*18432))
    a(f"v_mul_lo_u32 v{VWI}, v12, s51"); a(f"v_lshl_add_u32 v{VWI}, v10, 4, v{VWI}")
    for i in range(1, 8): a(f"v_add_u32 v{VWI+i}, {i*18432}, v{VWI}")
    a("s_waitcnt lgkmcnt(0)")
    srd(20, 6, "s47", W_BYTES)
    vm = Cnt(a, "vmcnt", 63); lg = Cnt(a, "lgkmcnt", 15)
    cur_soff = [None]
    def w_load(kb, i):
        r = RAW[kb % NR] + 4*i
        if cur_soff[0] != kb:
            a(f"s_mul_i32 s54, s{80+kb}, 9216"); cur_soff[0] = kb
        a(f"buffer_load_dwordx4 v[{r}:{r+3}], v{VWI+i}, s[20:23], s54 offen {o('wflag', 'nt')}")
        vm.issue(("W", kb))
    w_ops = lambda kb: [lambda i=i: w_load(kb, i) for i in range(8)]
    for f in w_ops(0): f()
    a("s_lshl_b32 s50, s44, 8")
    a(f"v_lshlrev_b32 v{VS}, 3, v10"); a(f"v_add_u32 v{VS}, s50, v{VS}")
    a("v_lshrrev_b32 v13, 1, v0"); a("v_and_b32 v14, 1, v0")
    a("v_add_u32 v13, s89, v13"); a("v_subrev_u32 v15, 9, v13"); a("v_min_u32 v13, v13, v15")
    a(f"v_lshlrev_b32 v{VA}, 7, v13"); a(f"v_lshl_add_u32 v{VA}, v14, 4, v{VA}")
    a("s_lshl_b32 s50, s3, 5"); a(f"v_add_u32 v{VA}, s50, v{VA}")
    xdma_voff(VX)
    for n_ in range(1, 9):
        a(f"s_add_u32 s{80+n_}, s{79+n_}, 128"); a(f"s_cmp_eq_u32 s{80+n_}, 1152"); a(f"s_cselect_b32 s{80+n_}, 0, s{80+n_}")
    srd(24, 8, None, S_BYTES); srd(28, 10, None, S_BYTES); srd(32, 12, None, A_BYTES)
    a(f"buffer_load_dwordx2 v[16:17], v{VS}, s[24:27], 0 offen"); vm.issue("C")
    a(f"buffer_load_dwordx2 v[18:19], v{VS}, s[28:31], 0 offen"); vm.issue("C")
    a(f"buffer_load_dwordx4 v[24:27], v{VA}, s[32:35], 0 offen"); vm.issue("C")
    srd(16, 4, "s46", X_BYTES)
    if XBY == "L":
        for f in x1_ops(0, vm, VX): f()
    XLA = o("xla", 1)
    if NR == 2:
        for f in w_ops(1)[:PRE]: f()
    else:
        for f in w_ops(1)[:PRE]: f()
    srd(36, 14, "s48", O_BYTES)
    a("s_and_b32 s55, s3, 1"); a("s_lshl_b32 s55, s55, 10")
    a("s_lshr_b32 s50, s3, 1"); a("s_mul_i32 s50, s50, 18432"); a("s_add_u32 s55, s55, s50")
    a("v_lshrrev_b32 v13, 3, v10"); a("v_lshlrev_b32 v13, 12, v13")
    a("v_and_b32 v14, 1, v10"); a("v_lshl_add_u32 v13, v14, 10, v13")
    a("v_and_b32 v15, 6, v10"); a("v_add_u32 v15, v15, v14")
    a("s_and_b32 s50, s3, 1"); a("s_lshl_b32 s50, s50, 1"); a("v_add_u32 v20, s50, v11")
    a("v_lshl_add_u32 v15, v20, 4, v15"); a("v_lshl_add_u32 v13, v15, 4, v13")
    a("s_lshr_b32 s50, s3, 1"); a("s_lshl_b32 s50, s50, 11")
    a(f"v_add_u32 v{VWR0}, s50, v13"); a(f"v_xor_b32 v{VWR1}, 16, v{VWR0}")
    a("v_lshrrev_b32 v13, 4, v0"); a("s_lshl_b32 s50, s3, 2"); a("v_add_u32 v13, s50, v13")
    a("v_and_b32 v14, 15, v0"); a("v_and_b32 v15, 7, v13"); a("v_xor_b32 v15, v15, v14")
    a(f"v_lshlrev_b32 v{VOR}, 8, v13"); a(f"v_lshl_add_u32 v{VOR}, v15, 4, v{VOR}")
    a("s_movk_i32 s51, 9216"); a(f"v_mul_lo_u32 v{VOS}, v13, s51"); a(f"v_lshl_add_u32 v{VOS}, v14, 4, v{VOS}")
    a(f"s_add_u32 s50, s53, {ATAB}")
    a("v_min_u32 v22, 31, v0"); a("v_lshlrev_b32 v22, 5, v22"); a("v_add_u32 v22, s50, v22")
    a(f"v_lshlrev_b32 v{VAR}, 5, v11"); a(f"v_add_u32 v{VAR}, s50, v{VAR}")
    vm.wait("C")
    for i in range(4):
        a(f"v_lshlrev_b32 v{AF[0]+2*i}, 16, v{24+i}"); a(f"v_and_b32 v{AF[0]+2*i+1}, 0xffff0000, v{24+i}")
    a("s_mov_b32 s50, 0x58000000")
    for i in range(8): a(f"v_mul_f32 v{AF[0]+i}, s50, v{AF[0]+i}")
    a(f"ds_write_b128 v22, v[{AF[0]}:{AF[0]+3}]"); a(f"ds_write_b128 v22, v[{AF[0]+4}:{AF[0]+7}] offset:16")
    for i in range(2):
        a(f"v_lshlrev_b32 v{SC+2*i}, 16, v{16+i}"); a(f"v_and_b32 v{SC+2*i+1}, 0xffff0000, v{16+i}")
        a(f"v_lshlrev_b32 v{NZ+2*i}, 16, v{18+i}"); a(f"v_and_b32 v{NZ+2*i+1}, 0xffff0000, v{18+i}")
    a("s_mov_b32 s50, 0xa7000000")
    a("s_mov_b32 s51, 0x71800000")
    for e in range(4):
        a(f"v_mul_f32 v{NZ+e}, v{NZ+e}, v{SC+e}"); a(f"v_mul_f32 v{NZ+e}, s50, v{NZ+e}"); a(f"v_mul_f32 v{SC+e}, s51, v{SC+e}")
    a("s_waitcnt lgkmcnt(0)")
    def a_read(kb):
        r = AF[kb & 1]
        a(f"ds_read_b128 v[{r}:{r+3}], v{VAR} offset:{kb*64}"); a(f"ds_read_b128 v[{r+4}:{r+7}], v{VAR} offset:{kb*64+16}")
        lg.issue("a"); lg.issue("a")
    a_read(0)
    def convert(kb, fillers):
        R = RAW[kb % NR]; A = AF[kb & 1]
        steps = []
        def wr(e):
            a(f"ds_write_b128 v{VWR1 if e & 1 else VWR0}, v[{WO+4*e}:{WO+4*e+3}] offset:{(kb&1)*16384 + (e>>1)*128}"); lg.issue("w")
        for e in range(4):
            for hf in range(2):
                def st(e=e, hf=hf):
                    if o("noconv"):
                        if hf == 1 and WRM == "spread": wr(e)
                        return
                    for i in range(4*hf, 4*hf+4): a(f"v_fma_f32 v{R+4*i+e}, v{R+4*i+e}, v{SC+e}, v{NZ+e}")
                    for i in range(4*hf, 4*hf+4): a(f"v_mul_f32 v{R+4*i+e}, v{R+4*i+e}, v{A+i}")
                    for m in (2*hf, 2*hf+1): a(f"v_cvt_pk_bf16_f32 v{WO+4*e+m}, v{R+8*m+e}, v{R+8*m+4+e}")
                    if hf == 1 and WRM == "spread": wr(e)
                steps.append(st)
        vm.wait(("W", kb))
        stamp(LS, f"w{kb}")
        lg.wait("a")
        if kb < 8: a_read(kb+1)
        nf, ns = len(fillers), len(steps); fi = 0
        for si, s in enumerate(steps):
            s()
            while fi < min(nf, (si+1)*nf//ns + (1 if nf else 0)):
                fillers[fi](); fi += 1
        while fi < nf:
            fillers[fi](); fi += 1
        if WRM != "spread":
            for e in range(4): wr(e)
    def p0_ops(m=0):
        def piece(kb):
            a(f"s_add_u32 m0, s55, {pslot(m) + kb*2048}")
            a(f"s_add_u32 s52, s{80+kb}, {(16*(F+2*m))*1152}")
            a(f"buffer_load_dwordx4 v{VX}, s[16:19], s52 offen lds")
            vm.issue(("P", m))
        return [lambda kb=kb: piece(kb) for kb in range(9)]
    def preg_ops(m):
        def piece(kb):
            if kb == 0: a(f"s_mov_b32 s54, {(16*(F+2*m))*1152}")
            r = preg(m) + 4*kb
            a(f"buffer_load_dwordx4 v[{r}:{r+3}], v{VX}, s[16:19], s54 offen offset:{kb*128}")
            vm.issue(("P", m))
        return [lambda kb=kb: piece(kb) for kb in range(9)]
    def pwrite(m, inter=None):
        vm.wait(("P", m))
        if o("nopw"): return
        for kb in range(9):
            r = preg(m) + 4*kb
            a(f"ds_write_b128 v{VXW if m & 1 else VXW+1}, v[{r}:{r+3}] offset:{kb*2048}"); lg.issue("px")
            if inter: inter.pop(0)()
            elif o("pwpace", True): lg.wait_all()
    stq = []; stn = [0]
    def fetch_tiles(lst):
        for (slot, row0, half) in lst:
            r = STB + 4*(stn[0] % STN); stn[0] += 1
            a(f"ds_read_b128 v[{r}:{r+3}], v{VOR} offset:{slot*4096}"); lg.issue(("o", r))
            stq.append((r, row0, half))
    def do_stores(n):
        for _ in range(min(n, len(stq))):
            r, row0, half = stq.pop(0)
            lg.wait(("o", r))
            if o("nost"): continue
            if half:
                lab[0] += 1
                a("s_cmp_eq_u32 s45, 6"); a("s_cselect_b32 s50, 2, 1"); a("s_cmp_ge_u32 s3, s50"); a(f"s_cbranch_scc1 L_sk{lab[0]}")
            a(f"s_mov_b32 s52, {row0*9216}")
            a(f"buffer_store_dwordx4 v[{r}:{r+3}], v{VOS}, s[36:39], s52 offen {STFLAG}")
            if half: a.label(f"L_sk{lab[0]}")
            vm.issue("S", optional=half)
    def bar(n):
        stamp(LS, f"a{n}")
        keep = [t for t in lg.ops]
        if lg.ops: lg.wait_all()
        a("s_barrier")
        stamp(LS, f"b{n}")
    def mix(l1, l2):
        r = []; i = j = 0
        while i < len(l1) or j < len(l2):
            if j >= len(l2) or (i < len(l1) and i*len(l2) <= j*len(l1)): r.append(l1[i]); i += 1
            else: r.append(l2[j]); j += 1
        return r
    stamp(LS, "s")
    p0 = p0_ops()
    for n in range(9):
        fill = []
        if NR == 2:
            if n < 8:
                fill = w_ops(n+1)[PRE:]
                if XBY == "L": fill = mix(x1_ops(n+1, vm, VX), fill)
        else:
            if n < 7: fill = w_ops(n+2)
            elif n == 7: fill = p0
            if n == 0: fill = w_ops(1)[PRE:] + fill
            if XBY == "L" and n + XLA <= 8:
                assert XLA == 1
                fill = mix(x1_ops(n+XLA, vm, VX), fill)
        post = []
        if n == 0 and o("c0first", False): post, fill = fill, []
        convert(n, fill)
        stamp(LS, f"c{n}")
        if XBY == "L": vm.wait(("X", n))
        bar(n)
        for f in post: f()
        if NR == 2:
            if n < 7:
                for f in w_ops(n+2)[:PRE]: f()
            elif n == 7:
                for f in p0: f()
    for f in p0_ops(1): f()
    vm.wait(("P", 0)); bar(9)
    SP = o("sp", [5, 5, 4, 3])
    p1t = lambda st_: [(p1_out[t], trow(t), t == F) for t in p1_order if wstage[t] == st_]
    for f in p0_ops(2): f()
    fetch_tiles(p1t(8))
    do_stores(SP[0])
    vm.wait(("P", 1)); bar(10)
    for f in p0_ops(3): f()
    fetch_tiles(p1t(9) + [(p2slot(0, 0), prow(0, 0), False)])
    do_stores(SP[1])
    vm.wait(("P", 2)); bar(11)
    fetch_tiles(p1t(10) + [(p2slot(0, 1), prow(0, 1), False), (p2slot(1, 0), prow(1, 0), False)])
    do_stores(SP[2])
    vm.wait(("P", 3)); bar(12)
    fetch_tiles([(p2slot(1, 1), prow(1, 1), False), (p2slot(2, 0), prow(2, 0), False)])
    do_stores(SP[3]); bar(13)
    fetch_tiles([(p2slot(2, 1), prow(2, 1), False), (p2slot(3, 0), prow(3, 0), False)])
    do_stores(99)
    if STAMP:
        a("s_waitcnt vmcnt(0)"); a("s_add_u32 s3, s3, 4"); a("s_branch L_stamp")
    else:
        a("s_endpgm")

    a.label("L_compute")
    assert XBY == "L"
    if o("cpf", True):
        a("s_getpc_b64 s[50:51]")
        a.label("L_pc")
        a(f"s_sub_u32 s50, s50, L_pc-{NAME}_kernel"); a("s_subb_u32 s51, s51, 0")
        a("s_lshl_b32 s52, s41, 2"); a("s_add_u32 s52, s52, s3"); a("s_mul_i32 s52, s52, CPL*64")
        a("v_lshlrev_b32 v4, 6, v0"); a("v_add_u32 v4, s52, v4")
        a(f"v_min_u32 v4, L_end-{NAME}_kernel, v4")
        a("v_cmp_gt_u32 vcc, CPL, v0"); a("s_and_saveexec_b64 s[52:53], vcc")
        a("global_load_dword v255, v4, s[50:51]")
        a("s_mov_b64 exec, s[52:53]")
    WP = 112; ACC = 24; FR1 = [8, 12, 16, 20]
    AC0, AC1, B0, B1, VO, CVX = 2, 3, 4, 5, 6, 7
    if XBY == "C":
        xdma_voff(CVX)
    a("v_and_b32 v10, 15, v0"); a("v_lshrrev_b32 v11, 4, v0")
    vc = Cnt(a, "vmcnt", 63)
    if XBY == "C":
        a("s_waitcnt lgkmcnt(0)")
        srd(16, 4, "s46", X_BYTES)
        for f in x1_ops(0, vc, CVX): f()
        for f in x1_ops(1, vc, CVX): f()
    a("v_lshrrev_b32 v12, 1, v10"); a("v_xor_b32 v12, v12, v11")
    a(f"v_lshlrev_b32 v{AC0}, 7, v10"); a(f"v_lshl_add_u32 v{AC0}, v12, 4, v{AC0}")
    a(f"v_add_u32 v{AC0}, {slot1(0)}, v{AC0}"); a(f"v_xor_b32 v{AC1}, 64, v{AC0}")
    a("v_and_b32 v12, 2, v10"); a("v_lshlrev_b32 v12, 2, v12")
    a("v_lshrrev_b32 v13, 2, v10"); a("v_lshl_add_u32 v12, v13, 1, v12")
    a("v_and_b32 v13, 1, v10"); a("v_add_u32 v12, v12, v13")
    a("v_lshl_add_u32 v12, v11, 4, v12")
    a("s_lshl_b32 s50, s3, 12")
    a(f"v_lshlrev_b32 v{B0}, 4, v12"); a(f"v_add_u32 v{B0}, s50, v{B0}"); a(f"v_xor_b32 v{B1}, 16, v{B0}")
    a("s_lshl_b32 s50, s3, 2"); a("v_add_u32 v12, s50, v11")
    a("v_and_b32 v13, 7, v10"); a("v_xor_b32 v12, v12, v13")
    a(f"v_lshlrev_b32 v{VO}, 8, v10"); a(f"v_lshl_add_u32 v{VO}, v12, 4, v{VO}")
    a("s_movk_i32 s51, 9216"); a("v_mul_lo_u32 v1, v10, s51"); a("v_lshl_add_u32 v1, v11, 4, v1")
    a("s_lshl_b32 s50, s3, 6"); a("v_add_u32 v1, s50, v1")
    a("s_waitcnt lgkmcnt(0)")
    srd(36, 14, "s48", O_BYTES)
    lc = Cnt(a, "lgkmcnt", 15)
    wreg = lambda ks, c: WP + 8*ks + 4*c
    def mfma1(acc, ks, c, fr, first):
        src = "0" if first else f"v[{acc+4*c}:{acc+4*c+3}]"
        a(f"v_mfma_f32_16x16x32_bf16 v[{acc+4*c}:{acc+4*c+3}], v[{wreg(ks,c)}:{wreg(ks,c)+3}], v[{fr}:{fr+3}], {src}")
    cvt1 = lambda acc, m: a(f"v_cvt_pk_bf16_f32 v{acc+m}, v{acc+2*m}, v{acc+2*m+1}")
    a("s_mov_b32 s90, 0x00ff00ff"); a("s_mov_b32 s91, 0x00ff00ff")
    def epi_wr(acc, slot, half=False, areg=VO):
        if half: a("s_mov_b64 exec, s[90:91]")
        a(f"ds_write_b128 v{areg}, v[{acc}:{acc+3}] offset:{slot*4096}"); lc.issue("ow")
        if half: a("s_mov_b64 exec, -1")
    def epi_ops(acc, slot, half=False, areg=VO):
        return [lambda m=m: cvt1(acc, m) for m in range(4)] + [lambda: epi_wr(acc, slot, half, areg)]
    a("s_waitcnt vmcnt(0)")
    H1 = o("h1", 3)
    EXT = [wreg(16, 0), wreg(16, 1), wreg(17, 0), wreg(17, 1)]
    tiles = early + late
    nj = 2*len(tiles)
    def bufs(kb):
        if kb < 7: seq = [(FR1 + EXT)[(kb*nj + j) % 8] for j in range(nj)]
        elif kb == 7:
            seq = []
            for j in range(nj):
                if j < nj - 8: seq.append((FR1 + EXT)[(kb*nj + j) % 8])
                else: seq.append(None)
            prev = seq[nj-16:nj-8]
            e = [r for r in prev if r in EXT]; f = [r for r in prev if r in FR1]
            seq[nj-8:] = e + f
        else:
            last = bufs(7)[-4:]
            seq = [last[j % 4] for j in range(nj)]
        return seq
    held = []
    free_at = {}
    done = [-1]
    for kb in range(9):
        stamp(CS, f"a{kb}")
        a("s_barrier")
        stamp(CS, f"b{kb}")
        xo = x1_ops(kb+2, vc, CVX) if (XBY == "C" and kb+2 <= 8) else []
        jobs = [(t, s) for t in tiles for s in range(2)]
        bf = bufs(kb)
        nxt = [0]
        def rd():
            j = nxt[0]
            if j >= nj: return False
            fr = bf[j]
            if free_at.get(fr, -1) > done[0]: return False
            if j - (done[0] + 1 - kb*nj) >= o("dist", 6): return False
            t, s = jobs[j]
            a(f"ds_read_b128 v[{fr}:{fr+3}], v{AC1 if s else AC0} offset:{t*2048}"); lc.issue(("a", kb, j))
            free_at[fr] = kb*nj + j; nxt[0] += 1
            return True
        wq = [(s, c) for s in range(2) for c in range(2)]
        def wrd():
            s, c = wq.pop(0); r = wreg(2*kb+s, c)
            a(f"ds_read_b128 v[{r}:{r+3}], v{B1 if c else B0} offset:{(kb&1)*16384 + s*2048 + c*1024}"); lc.issue(("w", kb, s))
        wrd(); wrd(); rd()
        for (job, fr, gj) in held:
            job(fr, 0)
            if wq: wrd()
            else: rd()
            job(fr, 1); done[0] = gj
            if wq: wrd()
            else: rd()
        while wq: wrd()
        while rd(): pass
        if XPOS == "start":
            while xo: xo.pop(0)()
        fillq = []
        for j in range(nj - H1):
            t, s = jobs[j]
            assert nxt[0] > j
            if j % o("we1", 2) == 0 or kb == 8: lc.wait([("a", kb, min(j + (o("we1", 2)-1 if kb < 8 else 0), nxt[0]-1)), ("w", kb, 1 if kb < 8 else s)])
            sk = o("nomf") and kb < 8
            if not sk: mfma1(ACC + 8*t, 2*kb+s, 0, bf[j], kb == 0 and s == 0)
            rd()
            if not sk: mfma1(ACC + 8*t, 2*kb+s, 1, bf[j], kb == 0 and s == 0)
            done[0] = kb*nj + j
            if nxt[0] - j - 1 < o("dist", 6) - 1 and kb != 8: rd()
            if XPOS == "spread" and xo and j % 3 == 1: xo.pop(0)()
            if kb == 8:
                if j >= 5 and j % 2 == 1 and wstage[jobs[j-4][0]] == 8:
                    tt = jobs[j-4][0]
                    fillq += epi_ops(ACC + 8*tt, p1_out[tt], half=(tt == F))
                for _ in range(o("e8", 2)):
                    if fillq: fillq.pop(0)()
        while rd(): pass
        assert nxt[0] == nj, (kb, nxt[0])
        while fillq: fillq.pop(0)()
        while xo: xo.pop(0)()
        nb = slot1(kb+1) if kb < 8 else pslot(0)
        d = nb - slot1(kb)
        lc.wait_all()
        op = "v_add_u32" if d >= 0 else "v_subrev_u32"
        a(f"{op} v{AC0}, {abs(d)}, v{AC0}"); a(f"{op} v{AC1}, {abs(d)}, v{AC1}")
        if XBY == "C" and kb < 8: vc.wait(("X", kb+1))
        held = [((lambda fr, c, t=jobs[j][0], s=jobs[j][1], kb=kb: mfma1(ACC + 8*t, 2*kb+s, c, fr, kb == 0 and s == 0)), bf[j], kb*nj + j) for j in range(nj-H1, nj)]
    held = [(job, fr) for (job, fr, gj) in held]
    assert H1 == 3
    XACC, YACC = ACC, ACC + 8
    NB = 9; HOLD = 3; WE = o("we", 3)
    heldregs = [fr for (_, fr) in held]
    ring = [r for r in FR1 if r not in heldregs] + [ACC+16, ACC+20, ACC+24, ACC+28, ACC+32] + heldregs
    def pair_body(pi):
        nonlocal held
        jobs = [(b, ks) for b in range(2) for ks in range(18)]
        def rd(j):
            b, ks = jobs[j]; fr = ring[j % NB]
            a(f"ds_read_b128 v[{fr}:{fr+3}], v{AC1 if ks & 1 else AC0} offset:{b*18432 + (ks>>1)*2048}"); lc.issue(("p", j))
        pre = NB - HOLD
        hm_ = [(job, fr, c) for (job, fr) in held for c in range(2)]
        rd(0); rd(1); nxt = 2
        for (job, fr, c) in hm_:
            job(fr, c)
            if nxt < pre: rd(nxt); nxt += 1
        fillq = []
        for j in range(36 - HOLD):
            b, ks = jobs[j]
            if j % WE == 0: lc.wait(("p", min(j + WE - 1, 35)))
            acc = YACC if b else XACC
            mfma1(acc, ks, 0, ring[j % NB], ks == 0)
            if nxt < 36 and nxt - NB < j: rd(nxt); nxt += 1
            mfma1(acc, ks, 1, ring[j % NB], ks == 0)
            if o("deep", True) and nxt < 36 and nxt - NB <= j and nxt - j - 1 < NB - 1 and not fillq: rd(nxt); nxt += 1
            if j == 2:
                if pi > 0: fillq += epi_ops(YACC, 0, areg=B1)
                if pi < 2:
                    for tt in p1_order:
                        if wstage[tt] == 9 + pi: fillq += epi_ops(ACC + 8*tt, p1_out[tt], half=(tt == F))
            if j == 22: fillq += epi_ops(XACC, 0, areg=B0)
            if fillq:
                f_ = fillq.pop(0)
                if not o("noepi"): f_()
                if len(fillq) > 32 - HOLD - j + 3: fillq.pop(0)()
        assert not fillq and nxt == 36, (len(fillq), nxt)
        lc.wait_all()
        held = [((lambda fr, c, ks=jobs[j][1]: mfma1(YACC, ks, c, fr, False)), ring[j % NB]) for j in range(36-HOLD, 36)]
    a(f"v_add_u32 v{B0}, {8*4096}, v{VO}")
    stamp(CS, "a9")
    a("s_barrier")
    stamp(CS, "b9")
    pair_body(0)
    stamp(CS, "a10")
    a(f"s_mov_b32 s80, {(-2*PSTR) & 0xffffffff}")
    def adv():
        a(f"v_add_u32 v{AC0}, s80, v{AC0}"); a(f"v_add_u32 v{AC1}, s80, v{AC1}")
        a(f"s_mov_b32 s80, {PSTR}")
        a(f"v_add_u32 v{B1}, 4096, v{B0}"); a(f"v_xor_b32 v{B0}, 8192, v{B0}")
    peel1 = any(v == 10 for v in wstage.values()) or o("unroll")
    if peel1:
        adv(); a("s_barrier"); stamp(CS, "b10"); pair_body(1); stamp(CS, "a11")
    if o("unroll"):
        for it in (2, 3):
            adv(); a("s_barrier"); stamp(CS, f"b{9+it}"); pair_body(it); stamp(CS, f"a{10+it}")
    else:
        a(f"s_mov_b32 s82, {2 if peel1 else 1}")
        a.label("L_p2")
        adv(); a("s_barrier"); lc.ops = []
        pair_body(2)
        a("s_add_u32 s82, s82, 1"); a(f"s_cmp_lt_u32 s82, {NP}"); a("s_cbranch_scc1 L_p2")
    a("s_barrier")
    stamp(CS, "b13")
    for (job, fr) in held:
        job(fr, 0); job(fr, 1)
    a(f"s_mov_b32 s52, {prow(NP-1, 1)*9216}")
    a("s_nop 6")
    for m in range(4): cvt1(YACC, m)
    a(f"buffer_store_dwordx4 v[{YACC}:{YACC+3}], v1, s[36:39], s52 offen {STFLAG}")
    if STAMP:
        a("s_waitcnt vmcnt(0)")
        a.label("L_stamp")
        a("s_memrealtime s[58:59]"); a(f"{MT} s[94:95]")
        a("s_getreg_b32 s96, hwreg(HW_REG_XCC_ID)"); a("s_getreg_b32 s97, hwreg(HW_REG_HW_ID)")
        a("s_waitcnt lgkmcnt(0)")
        if o("xchk"):
            w1, w2 = o("xchk")
            a("s_cmp_lg_u32 s3, 1"); a("s_cbranch_scc1 L_end")
            a("s_mov_b32 s84, s56"); a("s_and_b32 s85, s57, 0xffff"); a("s_mov_b32 s86, 256"); a("s_mov_b32 s87, 0x20000")
            a("s_and_b32 s96, s96, 15"); a("s_add_u32 s96, s96, 1")
            a("v_mov_b32 v2, 0")
            a(f"s_cmp_lg_u32 s2, {w1}"); a("s_cbranch_scc1 L_x2")
            a("v_mov_b32 v1, s96"); a("buffer_store_dword v1, v2, s[84:87], 0 offen sc0 sc1"); a("s_waitcnt vmcnt(0)"); a("s_branch L_end")
            a.label("L_x2")
            a(f"s_cmp_lg_u32 s2, {w2}"); a("s_cbranch_scc1 L_end")
            a("s_mov_b32 s97, 0")
            a.label("L_poll")
            a("buffer_load_dword v1, v2, s[84:87], 0 offen sc0 sc1"); a("s_waitcnt vmcnt(0)")
            a("v_readfirstlane_b32 s98, v1"); a("s_add_u32 s97, s97, 1"); a("s_cmp_gt_u32 s97, 2000"); a("s_cbranch_scc1 L_end")
            a("s_cmp_eq_u32 s98, 0"); a("s_cbranch_scc1 L_poll")
            a("s_cmp_eq_u32 s98, s96"); a("s_cbranch_scc1 L_end")
            a.label("L_spin")
            a("s_memrealtime s[58:59]"); a("s_waitcnt lgkmcnt(0)")
            a("s_sub_u32 s99, s58, s62"); a("s_cmp_lt_u32 s99, 5000"); a("s_cbranch_scc1 L_spin")
        elif o("spin"):
            K_, wg_ = o("spin")
            a(f"s_cmp_lg_u32 s2, {wg_}"); a("s_cbranch_scc1 L_end")
            a("s_cmp_lg_u32 s3, 1"); a("s_cbranch_scc1 L_end")
            src = "s64" if CS else "s94"
            a(f"s_sub_u32 s98, {src}, s62"); a(f"s_mul_i32 s98, s98, {K_}"); a("s_min_u32 s98, s98, 20000")
            a.label("L_spin")
            a("s_memrealtime s[58:59]"); a("s_waitcnt lgkmcnt(0)")
            a("s_sub_u32 s99, s58, s62"); a("s_cmp_lt_u32 s99, s98"); a("s_cbranch_scc1 L_spin")
        elif o("dbg"):
            a("s_mov_b32 s84, s56"); a("s_and_b32 s85, s57, 0xffff"); a("s_mov_b32 s86, 256"); a("s_mov_b32 s87, 0x20000")
            a("s_not_b32 s98, s60")
            a("v_mov_b32 v1, s58"); a("v_mov_b32 v2, s98"); a("v_cmp_eq_u32 vcc, 1, v0"); a("s_nop 1"); a("v_cndmask_b32 v1, v1, v2, vcc")
            a("v_mov_b32 v2, s60"); a("v_cmp_eq_u32 vcc, 2, v0"); a("s_nop 1"); a("v_cndmask_b32 v1, v1, v2, vcc")
            a("v_lshlrev_b32 v2, 2, v0"); a("v_cmp_gt_u32 vcc, 3, v0"); a("s_and_saveexec_b64 s[100:101], vcc")
            a("buffer_atomic_umax v1, v2, s[84:87], 0 offen")
            a("s_mov_b64 exec, s[100:101]")
            a(f"s_cmp_lg_u32 s2, {o('dbg')}"); a("s_cbranch_scc1 L_end")
            a("s_and_b32 s99, s3, 3"); a("s_cmp_lg_u32 s99, 1"); a("s_cbranch_scc1 L_end")
            a("v_mov_b32 v1, 0")
            for i in range(8):
                src = f"s{64+2*i}" if i < 7 else "s94"
                a(f"s_sub_u32 s99, {src}, s62"); a(f"v_mov_b32 v2, s99"); a(f"v_cmp_eq_u32 vcc, {i}, v0"); a("s_nop 1"); a("v_cndmask_b32 v1, v1, v2, vcc")
            a("s_cmp_ge_u32 s3, 4"); a("s_cselect_b32 s98, 44, 12"); a("s_cselect_b32 s99, 5, 8")
            a("v_lshlrev_b32 v2, 2, v0"); a("v_cmp_gt_u32 vcc, s99, v0"); a("s_and_saveexec_b64 s[100:101], vcc")
            a("buffer_store_dword v1, v2, s[84:87], s98 offen"); a("s_waitcnt vmcnt(0)")
        else:
            a("s_mov_b32 s84, s56"); a("s_and_b32 s85, s57, 0xffff"); a("s_mov_b32 s86, 0x100000"); a("s_mov_b32 s87, 0x20000")
            a("s_lshl_b32 s98, s2, 3"); a("s_add_u32 s98, s98, s3"); a("s_lshl_b32 s98, s98, 6")
            vals = ["s60", "s58", "s62", "s94"] + [f"s{64+2*i}" for i in range(8)] + ["0", "0x5a5a1234", "s97", "s96"]
            a("v_mov_b32 v1, 0")
            for i, v in enumerate(vals):
                a(f"v_mov_b32 v2, {v}"); a(f"v_cmp_eq_u32 vcc, {i}, v0"); a("s_nop 1"); a("v_cndmask_b32 v1, v1, v2, vcc")
            a("v_lshlrev_b32 v2, 2, v0"); a("v_cmp_gt_u32 vcc, 16, v0"); a("s_and_saveexec_b64 s[100:101], vcc")
            a("buffer_store_dword v1, v2, s[84:87], s98 offen"); a("s_waitcnt vmcnt(0)")
    a.label("L_end")
    a(f".set CPL, (L_end-{NAME}_kernel+8191)/8192")
    open(out, "w").write(wrap(a.text(), (256,1,1), 512, LDS, 256, 102, 256))

def st(*keys): return {k: i for i, k in enumerate(keys)}
STD = dict(stamp=True, rt=True, cs=st("b0", "b4", "b8", "a9", "b9", "a10", "b13"), ls=st("s", "a0", "a4", "a8", "a9", "a10", "a11", "a12"))
if __name__ == "__main__":
    B = dict(nraw=3, xby="L", wr="spread")
    F2 = dict(B, stamp=True, rt=True, unroll=True, cs=st("b0", "b4", "b8", "b9", "b10", "b11", "b12", "b13"), ls=st("s", "a8", "a9", "a10", "a11", "a12", "a13"))
    gen("v8.s", B)
    gen("v8a.s", dict(F2))
    gen("v8b.s", dict(F2, cpf=False))
    gen("v8c.s", dict(F2, wflag=""))
    gen("v8d.s", dict(F2, rot=False, wflag=""))
    gen("v8e.s", dict(F2, c0first=True))
    gen("v8f.s", dict(F2, wr="end"))
    gen("h8a.s", dict(B, rot=False, wflag=""))
    gen("h8b.s", dict(B, rot=True, wflag=""))
    gen("h8c.s", dict(B, rot=False, wflag="nt"))
    gen("h8d.s", dict(B, rot=False, wflag="", cpf=False))
    gen("h8e.s", dict(B, rot=False, wflag="", stflag=""))
    gen("h8f.s", dict(B, rot=False, wflag="", stflag="nt"))
    S = dict(B, rot=False, wflag="", stamp=True, rt=True)
    gen("sp_a.s", dict(S, cs=st("b8"), spin=(4, 133)))
    gen("sp_b.s", dict(S, cs=st("b8"), spin=(8, 133)))
    gen("sp_c.s", dict(S, cs=st("b0"), spin=(16, 133)))
    gen("sp_d.s", dict(S, cs=st("b0"), spin=(32, 133)))
    gen("sp_e.s", dict(S, spin=(3, 133)))
    gen("sp_f.s", dict(S, spin=(6, 133)))
    X = dict(S, dbg=1)
    gen("xc_a.s", dict(X, xchk=(133, 141)))
    gen("xc_b.s", dict(X, xchk=(5, 13)))
    gen("xc_c.s", dict(X, xchk=(64, 192)))
    gen("xc_d.s", dict(X, xchk=(133, 134)))
    gen("xc_e.s", dict(X, xchk=(16, 48)))
```

```python
import sys
from common import *
from gen_v1 import Cnt

def gen(out, opts):
    o = lambda k, d=None: opts.get(k, d)
    STAMP = o("stamp", False); STFLAG = o("stflag", "sc1")
    MT = "s_memrealtime" if o("rt") else "s_memtime"
    WRM = o("wr", "end"); PRE = o("pre", 4)
    LS = o("ls", {}); CS = o("cs", {})
    a = Asm()
    F = 10; NP = 4
    X1 = 12*4096; S1 = 21504; PSTR = 38912
    slot1 = lambda u: X1 + (u % 3)*S1
    pslot = lambda m: X1 + ((m+2) % 3)*PSTR
    LDS = 163840
    ATAB = 8*4096
    p1_order = [0, 1, 2, 3, 4, F, 5, 6, 7, 8, 9]
    E8 = o("e8n", 5)
    wstage = {t: (8 if n < E8 else 9) for n, t in enumerate(p1_order)}
    p1_out = {}
    f8 = [4, 5, 6, 7, 8]; f9 = [0, 1, 2, 3, 9, 10]
    for t in p1_order: p1_out[t] = (f8 if wstage[t] == 8 else f9).pop(0)
    p2slot = lambda m, b: 11 if (m, b) == (0, 0) else 4 + (2*m + b - 1) % 4
    trow = lambda t: 288 if t == F else 16*t
    prow = lambda m, b: 16*(F + 2*m + b)
    lab = [0]
    def stamp(tab, key):
        if STAMP and key in tab: a(f"{MT} s[{64+2*tab[key]}:{65+2*tab[key]}]")
    def srd(d, lo, off, size):
        if off is None:
            a(f"s_mov_b32 s{d}, s{lo}"); a(f"s_and_b32 s{d+1}, s{lo+1}, 0xffff"); a(f"s_mov_b32 s{d+2}, {size}")
        else:
            a(f"s_add_u32 s{d}, s{lo}, {off}"); a(f"s_addc_u32 s{d+1}, s{lo+1}, 0"); a(f"s_and_b32 s{d+1}, s{d+1}, 0xffff")
            a(f"s_sub_u32 s{d+2}, {size}, {off}")
        a(f"s_mov_b32 s{d+3}, 0x20000")
    def xdma_setup(dst):
        a("v_lshrrev_b32 v13, 3, v0")
        a("s_and_b32 s50, s3, 1"); a("s_lshl_b32 s55, s50, 10"); a("s_lshl_b32 s50, s50, 2")
        a("v_lshrrev_b32 v14, 1, v13"); a("v_add_u32 v14, s50, v14")
        a("v_and_b32 v15, 7, v0"); a("v_xor_b32 v14, v14, v15")
        a("s_lshl_b32 s50, s3, 3"); a("v_add_u32 v13, s50, v13")
        a(f"v_mul_u32_u24 v{dst}, 1152, v13"); a(f"v_lshl_add_u32 v{dst}, v14, 4, v{dst}")
        a("s_lshl_b32 s53, s3, 10")
        a("s_lshr_b32 s50, s3, 1"); a("s_mul_i32 s50, s50, 18432"); a("s_add_u32 s55, s55, s50")
    def ktable():
        for n in range(1, 9):
            a(f"s_add_u32 s{80+n}, s{79+n}, 128"); a(f"s_cmp_eq_u32 s{80+n}, 1152"); a(f"s_cselect_b32 s{80+n}, 0, s{80+n}")
    def x1_ops(kb, vm, VX):
        def piece(j):
            a(f"s_add_u32 m0, s53, {slot1(kb) + j*4096}")
            a(f"s_add_u32 s52, s{80+kb}, {32*j*1152}")
            a(f"buffer_load_dwordx4 v{VX}, s[16:19], s52 offen lds")
            vm.issue(("X", kb))
        def extra():
            lab[0] += 1
            a("s_cmp_lg_u32 s3, 0"); a(f"s_cbranch_scc1 L_sk{lab[0]}")
            a(f"s_mov_b32 m0, {slot1(kb) + F*2048}")
            a(f"s_add_u32 s52, s{80+kb}, {288*1152}")
            a(f"buffer_load_dwordx4 v{VX}, s[16:19], s52 offen lds")
            a.label(f"L_sk{lab[0]}")
            vm.issue(("X", kb), optional=True)
        return [extra] + [lambda j=j: piece(j) for j in range(F//2)]
    def p_ops(m, vm, VX):
        def piece(kb):
            a(f"s_add_u32 m0, s55, {pslot(m) + kb*2048}")
            a(f"s_add_u32 s52, s{80+kb}, {(16*(F+2*m))*1152}")
            a(f"buffer_load_dwordx4 v{VX}, s[16:19], s52 offen lds")
            vm.issue(("P", m))
        return [lambda kb=kb: piece(kb) for kb in range(9)]
    if STAMP:
        a("s_memrealtime s[60:61]"); a(f"{MT} s[62:63]")
    a("s_load_dwordx4 s[4:7], s[0:1], 0")
    a("s_load_dwordx4 s[8:11], s[0:1], 16")
    a("s_load_dwordx4 s[12:15], s[0:1], 32")
    if STAMP: a("s_load_dwordx2 s[56:57], s[0:1], 56")
    a("s_and_b32 s40, s2, 7"); a("s_lshr_b32 s41, s2, 3")
    a("s_mul_i32 s42, s40, 63"); a("s_lshr_b32 s43, s42, 1")
    a("s_add_u32 s42, s42, 63"); a("s_lshr_b32 s42, s42, 1")
    a("s_add_u32 s43, s43, s41")
    a("s_cmp_ge_u32 s43, s42"); a("s_cbranch_scc1 L_end")
    a("s_mul_i32 s44, s43, 9363"); a("s_lshr_b32 s44, s44, 16")
    a("s_mul_i32 s50, s44, 7"); a("s_sub_u32 s45, s43, s50")
    a("v_lshrrev_b32 v1, 6, v0"); a("v_and_b32 v0, 63, v0")
    if o("rot", True):
        a("s_sub_u32 s49, s43, s41")
        a("s_max_u32 s49, s49, s50"); a("s_add_u32 s51, s50, 7"); a("s_min_u32 s51, s51, s42")
        a("s_sub_u32 s51, s51, s49")
        a("s_sub_u32 s89, s43, s49"); a("s_mul_i32 s89, s89, 9")
        a("s_movk_i32 s52, 16384"); a("s_cmp_eq_u32 s51, 7"); a("s_cselect_b32 s52, 9363, s52"); a("s_cmp_eq_u32 s51, 3"); a("s_cselect_b32 s52, 21846, s52")
        a("s_mul_i32 s89, s89, s52"); a("s_lshr_b32 s89, s89, 16")
        a("s_cmp_gt_u32 s49, s50"); a("s_addc_u32 s89, s89, s44")
        a("s_mul_i32 s49, s89, 7282"); a("s_lshr_b32 s49, s49, 16"); a("s_mul_i32 s49, s49, 9"); a("s_sub_u32 s89, s89, s49")
    else:
        a("s_mov_b32 s89, 0")
    a("v_readfirstlane_b32 s3, v1")
    a("s_lshl_b32 s80, s89, 7")
    a("s_mul_i32 s46, s45, %d" % (292*1152))
    a("s_lshl_b32 s47, s44, 9")
    a("s_mul_i32 s48, s45, %d" % (292*9216)); a("s_lshl_b32 s49, s44, 8"); a("s_add_u32 s48, s48, s49")
    a("s_cmp_ge_u32 s3, 4"); a("s_cbranch_scc0 L_compute")

    a("s_sub_u32 s3, s3, 4")
    VX, VA, VS, VWR0, VWR1, VOR, VOS, VAR = 3, 4, 5, 6, 7, 8, 9, 21
    RAW = [32, 64, 96]; AF = [128, 136]; SC = 144; NZ = 148; WO = 152; VWI = 168; STB, STN = 176, 20
    a("v_and_b32 v10, 31, v0"); a("v_lshrrev_b32 v11, 5, v0")
    a("s_lshl_b32 s50, s3, 1"); a("v_add_u32 v12, s50, v11")
    a("s_mov_b32 s51, %d" % (8*18432))
    a(f"v_mul_lo_u32 v{VWI}, v12, s51"); a(f"v_lshl_add_u32 v{VWI}, v10, 4, v{VWI}")
    for i in range(1, 8): a(f"v_add_u32 v{VWI+i}, {i*18432}, v{VWI}")
    a(f"v_lshlrev_b32 v{VS}, 3, v10"); a(f"v_add_u32 v{VS}, s49, v{VS}")
    a("v_lshrrev_b32 v13, 1, v0"); a("v_and_b32 v14, 1, v0")
    a("v_add_u32 v13, s89, v13"); a("v_subrev_u32 v15, 9, v13"); a("v_min_u32 v13, v13, v15")
    a(f"v_lshlrev_b32 v{VA}, 7, v13"); a(f"v_lshl_add_u32 v{VA}, v14, 4, v{VA}")
    a("s_lshl_b32 s50, s3, 5"); a(f"v_add_u32 v{VA}, s50, v{VA}")
    a("s_waitcnt lgkmcnt(0)")
    vm = Cnt(a, "vmcnt", 63); lg = Cnt(a, "lgkmcnt", 15)
    cur = [None]
    def w_load(kb, i):
        r = RAW[kb % 3] + 4*i
        if cur[0] != kb:
            a(f"s_mul_i32 s54, s{80+kb}, 9216"); cur[0] = kb
        a(f"buffer_load_dwordx4 v[{r}:{r+3}], v{VWI+i}, s[20:23], s54 offen {o('wflag', '')}")
        vm.issue(("W", kb))
    w_ops = lambda kb: [lambda i=i: w_load(kb, i) for i in range(8)]
    def consts():
        srd(24, 8, None, S_BYTES); srd(28, 10, None, S_BYTES); srd(32, 12, None, A_BYTES)
        a(f"buffer_load_dwordx2 v[16:17], v{VS}, s[24:27], 0 offen"); vm.issue("C")
        a(f"buffer_load_dwordx2 v[18:19], v{VS}, s[28:31], 0 offen"); vm.issue("C")
        a(f"buffer_load_dwordx4 v[24:27], v{VA}, s[32:35], 0 offen"); vm.issue("C")
    srd(20, 6, "s47", W_BYTES)
    if o("cfirst", True):
        w_ops(0)[0](); consts()
        for f in w_ops(0)[1:]: f()
    else:
        for f in w_ops(0): f()
        consts()
    ktable()
    for f in w_ops(1)[:PRE]: f()
    a("s_setreg_imm32_b32 hwreg(HW_REG_MODE, 4, 2), 3")
    srd(16, 4, "s46", X_BYTES)
    srd(36, 14, "s48", O_BYTES)
    xdma_setup(VX)
    a("v_lshrrev_b32 v13, 3, v10"); a("v_lshlrev_b32 v13, 12, v13")
    a("v_and_b32 v14, 1, v10"); a("v_lshl_add_u32 v13, v14, 10, v13")
    a("v_and_b32 v15, 6, v10"); a("v_add_u32 v15, v15, v14")
    a("s_and_b32 s50, s3, 1"); a("s_lshl_b32 s50, s50, 1"); a("v_add_u32 v20, s50, v11")
    a("v_lshl_add_u32 v15, v20, 4, v15"); a("v_lshl_add_u32 v13, v15, 4, v13")
    a("s_lshr_b32 s50, s3, 1"); a("s_lshl_b32 s50, s50, 11")
    a(f"v_add_u32 v{VWR0}, s50, v13"); a(f"v_xor_b32 v{VWR1}, 16, v{VWR0}")
    a("v_lshrrev_b32 v13, 4, v0"); a("s_lshl_b32 s50, s3, 2"); a("v_add_u32 v13, s50, v13")
    a("v_and_b32 v14, 15, v0"); a("v_and_b32 v15, 7, v13"); a("v_xor_b32 v15, v15, v14")
    a(f"v_lshlrev_b32 v{VOR}, 8, v13"); a(f"v_lshl_add_u32 v{VOR}, v15, 4, v{VOR}")
    a(f"v_mul_u32_u24 v{VOS}, 9216, v13"); a(f"v_lshl_add_u32 v{VOS}, v14, 4, v{VOS}")
    a(f"s_add_u32 s50, s53, {ATAB}")
    a("v_min_u32 v22, 31, v0"); a("v_lshlrev_b32 v22, 5, v22"); a("v_add_u32 v22, s50, v22")
    a(f"v_lshlrev_b32 v{VAR}, 5, v11"); a(f"v_add_u32 v{VAR}, s50, v{VAR}")
    vm.wait("C")
    for i in range(4):
        a(f"v_lshlrev_b32 v{AF[0]+2*i}, 16, v{24+i}"); a(f"v_and_b32 v{AF[0]+2*i+1}, 0xffff0000, v{24+i}")
    a("s_mov_b32 s50, 0x58000000")
    for i in range(8): a(f"v_mul_f32 v{AF[0]+i}, s50, v{AF[0]+i}")
    a(f"ds_write_b128 v22, v[{AF[0]}:{AF[0]+3}]"); a(f"ds_write_b128 v22, v[{AF[0]+4}:{AF[0]+7}] offset:16")
    for i in range(2):
        a(f"v_lshlrev_b32 v{SC+2*i}, 16, v{16+i}"); a(f"v_and_b32 v{SC+2*i+1}, 0xffff0000, v{16+i}")
        a(f"v_lshlrev_b32 v{NZ+2*i}, 16, v{18+i}"); a(f"v_and_b32 v{NZ+2*i+1}, 0xffff0000, v{18+i}")
    a("s_mov_b32 s50, 0xa7000000")
    a("s_mov_b32 s51, 0x71800000")
    for e in range(4):
        a(f"v_mul_f32 v{NZ+e}, v{NZ+e}, v{SC+e}"); a(f"v_mul_f32 v{NZ+e}, s50, v{NZ+e}"); a(f"v_mul_f32 v{SC+e}, s51, v{SC+e}")
    a("s_waitcnt lgkmcnt(0)")
    def a_read(kb):
        r = AF[kb & 1]
        a(f"ds_read_b128 v[{r}:{r+3}], v{VAR} offset:{kb*64}"); a(f"ds_read_b128 v[{r+4}:{r+7}], v{VAR} offset:{kb*64+16}")
        lg.issue(("a", kb)); lg.issue(("a", kb))
    a_read(0)
    def convert(kb, fillers, prebar=None):
        R = RAW[kb % 3]; A = AF[kb & 1]
        steps = []
        def wr(e):
            a(f"ds_write_b128 v{VWR1 if e & 1 else VWR0}, v[{WO+4*e}:{WO+4*e+3}] offset:{(kb&1)*16384 + (e>>1)*128}"); lg.issue("w")
        for e in range(4):
            for hf in range(2):
                def st(e=e, hf=hf):
                    if not o("noconv"):
                        if o("al", True): a(".p2align 3")
                        for i in range(4*hf, 4*hf+4): a(f"v_fma_f32 v{R+4*i+e}, v{R+4*i+e}, v{SC+e}, v{NZ+e}")
                        for i in range(4*hf, 4*hf+4): a(f"v_mul_f32 v{R+4*i+e}, v{R+4*i+e}, v{A+i}")
                        for m in (2*hf, 2*hf+1): a(f"v_cvt_pk_bf16_f32 v{WO+4*e+m}, v{R+8*m+e}, v{R+8*m+4+e}")
                    if e == 0 and hf == 1 and prebar is not None: prebar()
                    if hf == 1 and (WRM == "spread" or kb in (0, 8)): wr(e)
                steps.append(st)
        vm.wait(("W", kb))
        stamp(LS, f"w{kb}")
        lg.wait(("a", kb))
        if kb < 8 and prebar is None: a_read(kb+1)
        nf, ns = len(fillers), len(steps); fi = 0
        for si, s in enumerate(steps):
            s()
            stamp(LS, f"s{kb}_{si}")
            while fi < min(nf, (si+1)*nf//ns + (1 if nf else 0)):
                fillers[fi](); fi += 1
        while fi < nf:
            fillers[fi](); fi += 1
        stamp(LS, f"f{kb}")
        if not (WRM == "spread" or kb in (0, 8)):
            for e in range(4): wr(e)
    stq = []; stn = [0]
    def fetch_tiles(lst):
        for (slot, row0, half) in lst:
            r = STB + 4*(stn[0] % STN); stn[0] += 1
            a(f"ds_read_b128 v[{r}:{r+3}], v{VOR} offset:{slot*4096}"); lg.issue(("o", r))
            stq.append((r, row0, half))
    def do_stores(n):
        for _ in range(min(n, len(stq))):
            r, row0, half = stq.pop(0)
            lg.wait(("o", r))
            if half:
                lab[0] += 1
                a("s_cmp_eq_u32 s45, 6"); a("s_cselect_b32 s50, 2, 1"); a("s_cmp_ge_u32 s3, s50"); a(f"s_cbranch_scc1 L_sk{lab[0]}")
            a(f"s_mov_b32 s52, {row0*9216}")
            a(f"buffer_store_dwordx4 v[{r}:{r+3}], v{VOS}, s[36:39], s52 offen {STFLAG}")
            if half: a.label(f"L_sk{lab[0]}")
            vm.issue("S", optional=half)
    def bar(n):
        stamp(LS, f"a{n}")
        if lg.ops: lg.wait_all()
        a("s_barrier")
        stamp(LS, f"b{n}")
    stamp(LS, "s")
    for n in range(9):
        fill = w_ops(n+2) if n < 7 else []
        if n == 0: fill = w_ops(1)[PRE:] + fill
        if o("su", True):
            if n == 0: fill = w_ops(1)[PRE:]
            if n == 1: fill = w_ops(2) + w_ops(3)[:4]
            if n == 2: fill = w_ops(3)[4:] + w_ops(4)
        post = []
        RA = o("ra", True)
        if RA and n >= 2:
            def pb(n=n):
                bar(n-1)
                if n < 8: a_read(n+1)
            convert(n, fill, prebar=pb)
        else:
            convert(n, fill)
        stamp(LS, f"c{n}")
        if not RA or n == 0 or n == 8: bar(n)
    for i in range(5):
        if i == 4:
            lab[0] += 1
            a("s_cmp_ge_u32 s3, 2"); a(f"s_cbranch_scc1 L_sk{lab[0]}")
        a("s_cmp_ge_u32 s3, 2")
        a(f"s_cselect_b32 s52, s{80+min(2*i+1, 8)}, s{80+2*i}")
        a(f"s_cselect_b32 s50, {-16*1152 & 0xffffffff}, 0")
        a("s_add_u32 s52, s52, s50")
        a(f"s_add_u32 s52, s52, {16*(F+3)*1152}")
        a(f"s_add_u32 m0, s53, {pslot(1) + 18432 + i*4096}")
        a("s_nop 0")
        a(f"buffer_load_dwordx4 v{VX}, s[16:19], s52 offen lds")
        if i == 4: a.label(f"L_sk{lab[0]}")
        vm.issue(("P", 1), optional=(i == 4))
    preg = lambda m: 32 + 36*(m-2)
    def preg_ops(m):
        def piece(kb):
            a(f"s_add_u32 s52, s{80+kb}, {(16*(F+2*m))*1152}")
            r = preg(m) + 4*kb
            a(f"buffer_load_dwordx4 v[{r}:{r+3}], v{VX}, s[16:19], s52 offen")
            vm.issue(("P", m))
        return [lambda kb=kb: piece(kb) for kb in range(9)]
    VXW = 28
    a(f"v_lshlrev_b32 v{VXW}, 4, v0"); a(f"v_add_u32 v{VXW}, s55, v{VXW}")
    a(f"v_add_u32 v{VXW+1}, {pslot(3)}, v{VXW}"); a(f"v_add_u32 v{VXW}, {pslot(2)}, v{VXW}")
    def pw_ops(m):
        def w(kb):
            vm.wait(("P", m))
            r = preg(m) + 4*kb
            a(f"ds_write_b128 v{VXW + m - 2}, v[{r}:{r+3}] offset:{kb*2048}"); lg.issue("px")
        return [lambda kb=kb: w(kb) for kb in range(9)]
    def mix(l1, l2):
        r = []; i = j = 0
        while i < len(l1) or j < len(l2):
            if j >= len(l2) or (i < len(l1) and i*len(l2) <= j*len(l1)): r.append(l1[i]); i += 1
            else: r.append(l2[j]); j += 1
        return r
    STB = 104; STN = 36
    P3B = o("p3b", False)
    for f in preg_ops(2) + (preg_ops(3) if P3B else []): f()
    bar(9)
    SP = o("sp", [5, 6, 4, 3])
    p1t = lambda st_: [(p1_out[t], trow(t), t == F) for t in p1_order if wstage[t] == st_]
    p2t = lambda m: [(p2slot(m, b), prow(m, b), False) for b in range(2)]
    st_ops = lambda n: [lambda: do_stores(1) for _ in range(n)]
    fetch_tiles(p1t(8))
    if not P3B:
        for f in preg_ops(3): f()
    vm.wait(("P", 1))
    pw2 = pw_ops(2); N9 = o("pw9", 0)
    for f in mix(st_ops(SP[0]), pw2[:N9]): f()
    bar(10)
    pt = lambda m, b: (p2slot(m, b), prow(m, b), False)
    fetch_tiles(p1t(9) + [pt(0, 0)])
    for f in mix(st_ops(SP[1]), pw2[N9:]): f()
    bar(11)
    fetch_tiles([pt(0, 1), pt(1, 0)])
    for f in mix(st_ops(SP[2]), pw_ops(3)): f()
    bar(12)
    fetch_tiles([pt(1, 1), pt(2, 0)]); do_stores(SP[3])
    bar(13)
    fetch_tiles([pt(2, 1), pt(3, 0)]); do_stores(99)
    if STAMP:
        a("s_waitcnt vmcnt(0)"); a("s_add_u32 s3, s3, 4"); a("s_branch L_stamp")
    else:
        a("s_endpgm")

    a.label("L_compute")
    WP = 112; ACC = 24; FR1 = [8, 12, 16, 20]
    AC0, AC1, B0, B1, VO, CVX = 2, 3, 4, 5, 6, 7
    vc = Cnt(a, "vmcnt", 63)
    xdma_setup(CVX)
    ktable()
    if o("x2t", True):
        a("s_lshl_b32 s50, s44, 5"); a("s_lshl_b32 s51, s3, 3"); a("s_add_u32 s50, s50, s51"); a("v_add_u32 v8, s50, v0")
        a("v_mul_u32_u24 v9, 7282, v8"); a("v_lshrrev_b32 v9, 16, v9"); a("v_mul_u32_u24 v10, 9, v9"); a("v_sub_u32 v10, v8, v10")
        a("v_add_u32 v9, 160, v9"); a("v_mul_u32_u24 v9, 1152, v9"); a("v_lshl_add_u32 v9, v10, 7, v9")
        a("v_cmp_gt_u32 vcc, 8, v0"); a("v_mov_b32 v10, 0x7fffffff"); a("s_nop 0"); a("v_cndmask_b32 v9, v10, v9, vcc")
    a("s_waitcnt lgkmcnt(0)")
    srd(16, 4, "s46", X_BYTES)
    for f in x1_ops(0, vc, CVX): f()
    if o("x2t", True):
        a("buffer_load_dword v254, v9, s[16:19], 0 offen"); vc.issue("T")
    if o("cpf", True):
        a("s_getpc_b64 s[50:51]")
        a.label("L_pc")
        a(f"s_sub_u32 s50, s50, L_pc-{NAME}_kernel"); a("s_subb_u32 s51, s51, 0")
        a("s_lshl_b32 s52, s41, 2"); a("s_add_u32 s52, s52, s3"); a("s_mul_i32 s52, s52, CPL*64")
        a("v_lshlrev_b32 v4, 6, v0"); a("v_add_u32 v4, s52, v4")
        a(f"v_min_u32 v4, L_end-{NAME}_kernel, v4")
        a("v_cmp_gt_u32 vcc, CPL, v0"); a("s_and_saveexec_b64 s[92:93], vcc")
        a("global_load_dword v255, v4, s[50:51]"); vc.issue("T")
        a("s_mov_b64 exec, s[92:93]")
    a("v_and_b32 v10, 15, v0"); a("v_lshrrev_b32 v11, 4, v0")
    a("v_lshrrev_b32 v12, 1, v10"); a("v_xor_b32 v12, v12, v11")
    a(f"v_lshlrev_b32 v{AC0}, 7, v10"); a(f"v_lshl_add_u32 v{AC0}, v12, 4, v{AC0}")
    a(f"v_add_u32 v{AC0}, {slot1(0)}, v{AC0}"); a(f"v_xor_b32 v{AC1}, 64, v{AC0}")
    a("v_and_b32 v12, 2, v10"); a("v_lshlrev_b32 v12, 2, v12")
    a("v_lshrrev_b32 v13, 2, v10"); a("v_lshl_add_u32 v12, v13, 1, v12")
    a("v_and_b32 v13, 1, v10"); a("v_add_u32 v12, v12, v13")
    a("v_lshl_add_u32 v12, v11, 4, v12")
    a("s_lshl_b32 s50, s3, 12")
    a(f"v_lshlrev_b32 v{B0}, 4, v12"); a(f"v_add_u32 v{B0}, s50, v{B0}"); a(f"v_xor_b32 v{B1}, 16, v{B0}")
    a("s_lshl_b32 s50, s3, 2"); a("v_add_u32 v12, s50, v11")
    a("v_and_b32 v13, 7, v10"); a("v_xor_b32 v12, v12, v13")
    a(f"v_lshlrev_b32 v{VO}, 8, v10"); a(f"v_lshl_add_u32 v{VO}, v12, 4, v{VO}")
    a("v_mul_u32_u24 v1, 9216, v10"); a("v_lshl_add_u32 v1, v11, 4, v1")
    a("s_lshl_b32 s50, s3, 6"); a("v_add_u32 v1, s50, v1")
    if not o("x1late", True):
        for f in x1_ops(1, vc, CVX): f()
    srd(36, 14, "s48", O_BYTES)
    lc = Cnt(a, "lgkmcnt", 15)
    wreg = lambda ks, c: WP + 8*ks + 4*c
    def mfma1(acc, ks, c, fr, first):
        src = "0" if first else f"v[{acc+4*c}:{acc+4*c+3}]"
        a(f"v_mfma_f32_16x16x32_bf16 v[{acc+4*c}:{acc+4*c+3}], v[{wreg(ks,c)}:{wreg(ks,c)+3}], v[{fr}:{fr+3}], {src}")
    cvt1 = lambda dst, acc, m: a(f"v_cvt_pk_bf16_f32 v{dst+m}, v{acc+2*m}, v{acc+2*m+1}")
    if o("zero", True):
        a("v_mov_b32 v8, 0"); a("v_mov_b32 v9, 0"); a("v_mov_b32 v10, 0"); a("v_mov_b32 v11, 0")
        a(f"s_mul_i32 s50, s3, {S1}"); a(f"s_cmp_eq_u32 s3, 3"); a(f"s_cselect_b32 s50, 0, s50"); a(f"s_add_u32 s50, s50, {X1 + F*2048 + 1024}")
        a("v_lshlrev_b32 v12, 4, v0"); a("v_add_u32 v12, s50, v12")
        a("ds_write_b128 v12, v[8:11]"); a("s_waitcnt lgkmcnt(0)")
    a("s_mov_b32 s90, 0x00ff00ff"); a("s_mov_b32 s91, 0x00ff00ff")
    def epi_wr(src, off, half=False, areg=VO):
        if half: a("s_mov_b64 exec, s[90:91]")
        a(f"ds_write_b128 v{areg}, v[{src}:{src+3}] offset:{off}"); lc.issue("ow")
        if half: a("s_mov_b64 exec, -1")
    cvt_ops = lambda dst, acc: [lambda m=m: cvt1(dst, acc, m) for m in range(4)]
    def epi_ops(acc, slot, half=False):
        return cvt_ops(acc, acc) + [lambda: epi_wr(acc, slot*4096, half)]
    vc.wait(["T", ("X", 0)])
    if o("x1mid", True):
        for f in x1_ops(1, vc, CVX): f()
    H1 = 3
    EXT = [wreg(16, 0), wreg(16, 1), wreg(17, 0), wreg(17, 1)]
    tiles = p1_order
    nj = 2*len(tiles)
    def bufs(kb):
        if kb < 7: seq = [(FR1 + EXT)[(kb*nj + j) % 8] for j in range(nj)]
        elif kb == 7:
            seq = [(FR1 + EXT)[(kb*nj + j) % 8] if j < nj - 8 else None for j in range(nj)]
            prev = seq[nj-16:nj-8]
            seq[nj-8:] = [r for r in prev if r in EXT] + [r for r in prev if r in FR1]
        else:
            last = bufs(7)[-4:]
            seq = [last[j % 4] for j in range(nj)]
        return seq
    held = []; free_at = {}; done = [-1]
    def p1a_ops():
        def piece(i):
            if i == 4:
                lab[0] += 1
                a("s_cmp_ge_u32 s3, 2"); a(f"s_cbranch_scc1 L_sk{lab[0]}")
            a("s_cmp_ge_u32 s3, 2")
            a(f"s_cselect_b32 s52, s{80+min(2*i+1, 8)}, s{80+2*i}")
            a(f"s_cselect_b32 s50, {-16*1152 & 0xffffffff}, 0")
            a("s_add_u32 s52, s52, s50")
            a(f"s_add_u32 s52, s52, {16*(F+2)*1152}")
            a(f"s_add_u32 m0, s53, {pslot(1) + i*4096}")
            a("s_nop 0")
            a(f"buffer_load_dwordx4 v{CVX}, s[16:19], s52 offen lds")
            if i == 4: a.label(f"L_sk{lab[0]}")
            vc.issue(("P", 1), optional=(i == 4))
        return [lambda i=i: piece(i) for i in range(5)]
    pq = p_ops(0, vc, CVX) + p1a_ops()
    PST = o("pst", {4: 2, 5: 3, 6: 4, 7: 5})
    for kb in range(9):
        stamp(CS, f"a{kb}")
        a("s_barrier")
        stamp(CS, f"b{kb}")
        xo = x1_ops(kb+2, vc, CVX) if kb <= 6 else []
        if kb == 0 and not o("x1mid", True):
            for f in x1_ops(1, vc, CVX): f()
        po = [pq.pop(0) for _ in range(PST.get(kb, 0))]
        jobs = [(t, s) for t in tiles for s in range(2)]
        bf = bufs(kb)
        nxt = [0]
        def rd():
            j = nxt[0]
            if j >= nj: return False
            fr = bf[j]
            if free_at.get(fr, -1) > done[0]: return False
            if j - (done[0] + 1 - kb*nj) >= 6: return False
            t, s = jobs[j]
            a(f"ds_read_b128 v[{fr}:{fr+3}], v{AC1 if s else AC0} offset:{t*2048}"); lc.issue(("a", kb, j))
            free_at[fr] = kb*nj + j; nxt[0] += 1
            return True
        wq = [(s, c) for s in range(2) for c in range(2)]
        def wrd():
            s, c = wq.pop(0); r = wreg(2*kb+s, c)
            a(f"ds_read_b128 v[{r}:{r+3}], v{B1 if c else B0} offset:{(kb&1)*16384 + s*2048 + c*1024}"); lc.issue(("w", kb, s))
        wrd(); wrd(); rd()
        for (job, fr, gj) in held:
            job(fr, 0)
            if wq: wrd()
            else: rd()
            job(fr, 1); done[0] = gj
            if wq: wrd()
            else: rd()
        while wq: wrd()
        while rd(): pass
        if o("xpos", "fast") == "start":
            while xo: xo.pop(0)()
        fillq = []
        for j in range(nj - H1):
            t, s = jobs[j]
            if j % 2 == 0 or kb == 8: lc.wait([("a", kb, min(j + (1 if kb < 8 else 0), nxt[0]-1)), ("w", kb, 1 if kb < 8 else s)])
            sk = o("nomf") and kb < 8
            if not sk: mfma1(ACC + 8*t, 2*kb+s, 0, bf[j], kb == 0 and s == 0)
            rd()
            if not sk: mfma1(ACC + 8*t, 2*kb+s, 1, bf[j], kb == 0 and s == 0)
            done[0] = kb*nj + j
            if nxt[0] - j - 1 < 5 and kb != 8: rd()
            if j % o("xsp", 2) == 1:
                if xo: xo.pop(0)()
                elif po: po.pop(0)()
            if kb == 8:
                if j >= 5 and j % 2 == 1 and wstage[jobs[j-4][0]] == 8:
                    tt = jobs[j-4][0]
                    fillq += epi_ops(ACC + 8*tt, p1_out[tt], half=(tt == F))
                for _ in range(o("e8", 2)):
                    if fillq: fillq.pop(0)()
        while rd(): pass
        assert nxt[0] == nj, (kb, nxt[0])
        while fillq: fillq.pop(0)()
        while xo: xo.pop(0)()
        while po: po.pop(0)()
        nb = slot1(kb+1) if kb < 8 else pslot(0)
        d = nb - slot1(kb)
        lc.wait_all()
        op = "v_add_u32" if d >= 0 else "v_subrev_u32"
        a(f"{op} v{AC0}, {abs(d)}, v{AC0}"); a(f"{op} v{AC1}, {abs(d)}, v{AC1}")
        if kb < 8: vc.wait(("X", kb+1))
        else: vc.wait([("P", 0), ("P", 1)])
        held = [((lambda fr, c, t=jobs[j][0], s=jobs[j][1], kb=kb: mfma1(ACC + 8*t, 2*kb+s, c, fr, kb == 0 and s == 0)), bf[j], kb*nj + j) for j in range(nj-H1, nj)]
    assert not pq
    held = [(job, fr) for (job, fr, gj) in held]
    XACC, YACC = ACC, ACC + 8
    PK = ACC + 36
    NB = 9; HOLD = 3; WE = o("we", 3)
    heldregs = [fr for (_, fr) in held]
    ring = [r for r in FR1 if r not in heldregs] + [ACC+16, ACC+20, ACC+24, ACC+28, ACC+32] + heldregs
    def pair_body(pi):
        nonlocal held
        jobs = [(b, ks) for b in range(2) for ks in range(18)]
        def rd(j):
            b, ks = jobs[j]; fr = ring[j % NB]
            a(f"ds_read_b128 v[{fr}:{fr+3}], v{AC1 if ks & 1 else AC0} offset:{b*18432 + (ks>>1)*2048}"); lc.issue(("p", j))
        pre = NB - HOLD
        hm_ = [(job, fr, c) for (job, fr) in held for c in range(2)]
        rd(0); rd(1); nxt = 2
        for (job, fr, c) in hm_:
            job(fr, c)
            if nxt < pre: rd(nxt); nxt += 1
        fillq = []
        for j in range(36 - HOLD):
            b, ks = jobs[j]
            if j % WE == 0: lc.wait(("p", min(j + WE - 1, 35)))
            acc = YACC if b else XACC
            mfma1(acc, ks, 0, ring[j % NB], ks == 0)
            if nxt < 36 and nxt - NB < j: rd(nxt); nxt += 1
            mfma1(acc, ks, 1, ring[j % NB], ks == 0)
            if nxt < 36 and nxt - NB <= j and nxt - j - 1 < NB - 1 and not fillq: rd(nxt); nxt += 1
            if j == 1:
                if pi > 0: fillq += cvt_ops(YACC, YACC) + [lambda: epi_wr(YACC, 0, areg=B0)]
                else:
                    for tt in p1_order:
                        if wstage[tt] == 9: fillq += epi_ops(ACC + 8*tt, p1_out[tt], half=(tt == F))
            if j == 22: fillq += cvt_ops(XACC, XACC) + [(lambda: epi_wr(XACC, 4096, areg=B0)) if pi > 0 else (lambda: epi_wr(XACC, 11*4096))]
            if fillq:
                fillq.pop(0)()
                if len(fillq) > 32 - j: fillq.pop(0)()
        assert not fillq and nxt == 36, (len(fillq), nxt)
        lc.wait_all()
        held = [((lambda fr, c, ks=jobs[j][1]: mfma1(YACC, ks, c, fr, False)), ring[j % NB]) for j in range(36-HOLD, 36)]
    stamp(CS, "a9")
    a("s_barrier")
    stamp(CS, "b9")
    pair_body(0)
    stamp(CS, "a10")
    a(f"s_mov_b32 s80, {(-2*PSTR) & 0xffffffff}")
    a(f"v_add_u32 v{B0}, {6*4096}, v{VO}")
    a("s_mov_b32 s82, 1")
    for it in range(3 if o("unroll") else 1):
        if not o("unroll"): a.label("L_p2")
        a(f"v_add_u32 v{AC0}, s80, v{AC0}"); a(f"v_add_u32 v{AC1}, s80, v{AC1}")
        a(f"s_mov_b32 s80, {PSTR}")
        a(f"v_xor_b32 v{B0}, 8192, v{B0}")
        a("s_barrier")
        if o("unroll"): stamp(CS, f"b{10+it}")
        lc.ops = []
        pair_body(1)
    if not o("unroll"):
        a("s_add_u32 s82, s82, 1"); a(f"s_cmp_lt_u32 s82, {NP}"); a("s_cbranch_scc1 L_p2")
    stamp(CS, "a13")
    a("s_barrier")
    stamp(CS, "b13")
    for (job, fr) in held:
        job(fr, 0); job(fr, 1)
    a(f"s_mov_b32 s52, {prow(NP-1, 1)*9216}")
    a("s_nop 6")
    for m in range(4): cvt1(YACC, YACC, m)
    a(f"buffer_store_dwordx4 v[{YACC}:{YACC+3}], v1, s[36:39], s52 offen {STFLAG}")
    if STAMP:
        a("s_waitcnt vmcnt(0)")
        a.label("L_stamp")
        a("s_memrealtime s[58:59]"); a(f"{MT} s[94:95]")
        a("s_getreg_b32 s96, hwreg(HW_REG_XCC_ID)"); a("s_getreg_b32 s97, hwreg(HW_REG_HW_ID)")
        a("s_waitcnt lgkmcnt(0)")
        a("s_mov_b32 s84, s56"); a("s_and_b32 s85, s57, 0xffff"); a("s_mov_b32 s86, 0x100000"); a("s_mov_b32 s87, 0x20000")
        a("s_lshl_b32 s98, s2, 3"); a("s_add_u32 s98, s98, s3"); a("s_lshl_b32 s98, s98, 6")
        vals = ["s60", "s58", "s62", "s94"] + [f"s{64+2*i}" for i in range(8)] + ["0", "0x5a5a1234", "s97", "s96"]
        a("v_mov_b32 v1, 0")
        for i, v in enumerate(vals):
            a(f"v_mov_b32 v2, {v}"); a(f"v_cmp_eq_u32 vcc, {i}, v0"); a("s_nop 1"); a("v_cndmask_b32 v1, v1, v2, vcc")
        a("v_lshlrev_b32 v2, 2, v0"); a("v_cmp_gt_u32 vcc, 16, v0"); a("s_and_saveexec_b64 s[100:101], vcc")
        a("buffer_store_dword v1, v2, s[84:87], s98 offen"); a("s_waitcnt vmcnt(0)")
    a.label("L_end")
    a(f".set CPL, (L_end-{NAME}_kernel+8191)/8192")
    open(out, "w").write(wrap(a.text(), (256,1,1), 512, LDS, 256, 102, 256))

def st(*keys): return {k: i for i, k in enumerate(keys)}
if __name__ == "__main__":
    F3 = dict(stamp=True, rt=True, cs=st("b0", "b4", "b8", "b9", "b10", "b11", "b12", "b13"), ls=st("s", "w5", "c5", "b5", "a10", "a11", "a12", "a13"))
    B = dict(wr="spread", xsp=3)
    gen("v13.s", B)
    F3 = dict(F3, cs=st("b0", "b1", "b4", "b8", "b9", "a10", "b13"), ls=st("s", "w1", "w4", "a9", "a10", "a11", "a12", "a13"), **B)
    gen("v13a.s", dict(F3))
    gen("v13b.s", dict(F3, x1mid=False))
    gen("v13c.s", dict(F3, su=False))
    gen("v13d.s", dict(F3, pre=8))
    gen("v13e.s", dict(F3, x2t=False))
    gen("v13f.s", dict(F3, xsp=2))
    gen("h13b.s", dict(B, rot=False))
    gen("h13c.s", dict(B, cpf=False))
```

```python
import sys
from common import *
from gen_v1 import Cnt

def gen(out, opts):
    o = lambda k, d=None: opts.get(k, d)
    STAMP = o("stamp", False); STFLAG = o("stflag", "sc1")
    MT = "s_memrealtime" if o("rt") else "s_memtime"
    WRM = o("wr", "end"); PRE = o("pre", 4)
    LS = o("ls", {}); CS = o("cs", {})
    a = Asm()
    F = 10; NP = 4
    X1 = 12*4096; S1 = 22528; PSTR = 38912
    slot1 = lambda u: X1 + (u % 3)*S1
    pslot = lambda m: X1 + ((m+2) % 3)*PSTR
    LDS = 163840
    ATAB = 8*4096
    p1_order = [0, 1, 2, 3, 4, F, 5, 6, 7, 8, 9]
    E8 = o("e8n", 5)
    wstage = {t: (8 if n < E8 else 9) for n, t in enumerate(p1_order)}
    p1_out = {}
    f8 = [4, 5, 6, 7, 8]; f9 = [0, 1, 2, 3, 9, 10]
    for t in p1_order: p1_out[t] = (f8 if wstage[t] == 8 else f9).pop(0)
    p2slot = lambda m, b: 11 if (m, b) == (0, 0) else 4 + (2*m + b - 1) % 4
    trow = lambda t: 288 if t == F else 16*t
    prow = lambda m, b: 16*(F + 2*m + b)
    lab = [0]
    PADS = o("pads", [])
    def pad(key):
        if key in PADS:
            k = PADS.index(key)
            nxt_ = f"L_pad{k+4}" if k+4 < len(PADS) else "L_warm_ret"
            a(f"s_branch L_pads{k}"); a.label(f"L_pad{k}"); a(f"s_branch {nxt_}"); a.label(f"L_pads{k}")
    def stamp(tab, key):
        if STAMP and key in tab: a(f"{MT} s[{64+2*tab[key]}:{65+2*tab[key]}]")
    def srd(d, lo, off, size):
        if off is None:
            a(f"s_mov_b32 s{d}, s{lo}"); a(f"s_and_b32 s{d+1}, s{lo+1}, 0xffff"); a(f"s_mov_b32 s{d+2}, {size}")
        else:
            a(f"s_add_u32 s{d}, s{lo}, {off}"); a(f"s_addc_u32 s{d+1}, s{lo+1}, 0"); a(f"s_and_b32 s{d+1}, s{d+1}, 0xffff")
            a(f"s_sub_u32 s{d+2}, {size}, {off}")
        a(f"s_mov_b32 s{d+3}, 0x20000")
    def xdma_setup(dst):
        a("v_lshrrev_b32 v13, 3, v0")
        a("s_and_b32 s50, s3, 1"); a("s_lshl_b32 s55, s50, 10"); a("s_lshl_b32 s50, s50, 2")
        a("v_lshrrev_b32 v14, 1, v13"); a("v_add_u32 v14, s50, v14")
        a("v_and_b32 v15, 7, v0"); a("v_xor_b32 v14, v14, v15")
        a("s_lshl_b32 s50, s3, 3"); a("v_add_u32 v13, s50, v13")
        a(f"v_mul_u32_u24 v{dst}, 1152, v13"); a(f"v_lshl_add_u32 v{dst}, v14, 4, v{dst}")
        a("s_lshl_b32 s53, s3, 10")
        a("s_lshr_b32 s50, s3, 1"); a("s_mul_i32 s50, s50, 18432"); a("s_add_u32 s55, s55, s50")
        a("s_sub_u32 s95, 0, s50")
    def ktable():
        for n in range(1, 9):
            a(f"s_add_u32 s{80+n}, s{79+n}, 128"); a(f"s_cmp_eq_u32 s{80+n}, 1152"); a(f"s_cselect_b32 s{80+n}, 0, s{80+n}")
    def x1_ops(kb, vm, VX):
        def piece(j):
            a(f"s_add_u32 m0, s53, {slot1(kb) + j*4096}")
            a(f"s_add_u32 s52, s{80+kb}, {32*j*1152}")
            a(f"buffer_load_dwordx4 v{VX}, s[16:19], s52 offen lds")
            vm.issue(("X", kb))
        def extra():
            lab[0] += 1
            a("s_cmp_lg_u32 s3, 0"); a(f"s_cbranch_scc1 L_sk{lab[0]}")
            a(f"s_mov_b32 m0, {slot1(kb) + F*2048}")
            a(f"s_add_u32 s52, s{80+kb}, {288*1152}")
            a(f"buffer_load_dwordx4 v{VX}, s[16:19], s52 offen lds")
            a.label(f"L_sk{lab[0]}")
            vm.issue(("X", kb), optional=True)
        return [extra] + [lambda j=j: piece(j) for j in range(F//2)]
    def p_ops(m, vm, VX):
        def piece(kb):
            a(f"s_add_u32 m0, s55, {pslot(m) + kb*2048}")
            a(f"s_add_u32 s52, s{80+kb}, {(16*(F+2*m))*1152}")
            a(f"buffer_load_dwordx4 v{VX}, s[16:19], s52 offen lds")
            vm.issue(("P", m))
        return [lambda kb=kb: piece(kb) for kb in range(9)]
    def half_ops(m, b, cnt, VXr):
        def piece(i):
            if i == 4:
                lab[0] += 1
                a("s_cmp_ge_u32 s3, 2"); a(f"s_cbranch_scc1 L_sk{lab[0]}")
            a("s_cmp_ge_u32 s3, 2")
            a(f"s_cselect_b32 s52, s{80+min(2*i+1, 8)}, s{80+2*i}")
            a(f"s_add_u32 m0, s53, {pslot(m) + b*18432 + i*4096}")
            a("s_add_u32 s52, s52, s95")
            a(f"s_add_u32 s52, s52, {16*(F+2*m+b)*1152}")
            a(f"buffer_load_dwordx4 v{VXr}, s[16:19], s52 offen lds")
            if i == 4: a.label(f"L_sk{lab[0]}")
            cnt.issue(("P", m), optional=(i == 4))
        return [lambda i=i: piece(i) for i in range(5)]
    PBY = o("pby", "M")
    if STAMP:
        a("s_memrealtime s[60:61]"); a(f"{MT} s[62:63]")
    a("s_load_dwordx4 s[4:7], s[0:1], 0")
    a("s_load_dwordx4 s[8:11], s[0:1], 16")
    a("s_load_dwordx4 s[12:15], s[0:1], 32")
    if STAMP: a("s_load_dwordx2 s[56:57], s[0:1], 56")
    a("s_and_b32 s40, s2, 7"); a("s_lshr_b32 s41, s2, 3")
    a("s_mul_i32 s42, s40, 63"); a("s_lshr_b32 s43, s42, 1")
    a("s_add_u32 s42, s42, 63"); a("s_lshr_b32 s42, s42, 1")
    a("s_add_u32 s43, s43, s41")
    a("s_cmp_ge_u32 s43, s42"); a("s_cbranch_scc1 L_end")
    a("s_mul_i32 s44, s43, 9363"); a("s_lshr_b32 s44, s44, 16")
    a("s_mul_i32 s50, s44, 7"); a("s_sub_u32 s45, s43, s50")
    a("v_lshrrev_b32 v1, 6, v0"); a("v_and_b32 v0, 63, v0")
    if o("rot", True):
        a("s_sub_u32 s49, s43, s41")
        a("s_max_u32 s49, s49, s50"); a("s_add_u32 s51, s50, 7"); a("s_min_u32 s51, s51, s42")
        a("s_sub_u32 s51, s51, s49")
        a("s_sub_u32 s89, s43, s49"); a("s_mul_i32 s89, s89, 9")
        a("s_movk_i32 s52, 16384"); a("s_cmp_eq_u32 s51, 7"); a("s_cselect_b32 s52, 9363, s52"); a("s_cmp_eq_u32 s51, 3"); a("s_cselect_b32 s52, 21846, s52")
        a("s_mul_i32 s89, s89, s52"); a("s_lshr_b32 s89, s89, 16")
        a(f"s_mul_i32 s52, s40, {o('xm', 1)}"); a("s_add_u32 s89, s89, s52")
        a("s_mul_i32 s49, s89, 7282"); a("s_lshr_b32 s49, s49, 16"); a("s_mul_i32 s49, s49, 9"); a("s_sub_u32 s89, s89, s49")
    else:
        a("s_mov_b32 s89, 0")
    a("v_readfirstlane_b32 s3, v1")
    a("s_lshl_b32 s80, s89, 7")
    a("s_mul_i32 s46, s45, %d" % (292*1152))
    a("s_lshl_b32 s47, s44, 9")
    a("s_mul_i32 s48, s45, %d" % (292*9216)); a("s_lshl_b32 s49, s44, 8"); a("s_add_u32 s48, s48, s49")
    a("s_cmp_ge_u32 s3, 4"); a("s_cbranch_scc0 L_compute")

    a("s_sub_u32 s3, s3, 4")
    VX, VA, VS, VWR0, VWR1, VOR, VOS, VAR = 3, 4, 5, 6, 7, 8, 9, 21
    RAW = [32, 64, 96]; AF = [128, 136]; SC = 144; NZ = 148; WO = 152; VWI = 168; STB, STN = 176, 20
    a("v_and_b32 v10, 31, v0"); a("v_lshrrev_b32 v11, 5, v0")
    a("s_lshl_b32 s50, s3, 1"); a("v_add_u32 v12, s50, v11")
    a("s_mov_b32 s51, %d" % (8*18432))
    a(f"v_mul_lo_u32 v{VWI}, v12, s51"); a(f"v_lshl_add_u32 v{VWI}, v10, 4, v{VWI}")
    for i in range(1, 8): a(f"v_add_u32 v{VWI+i}, {i*18432}, v{VWI}")
    a(f"v_lshlrev_b32 v{VS}, 3, v10"); a(f"v_add_u32 v{VS}, s49, v{VS}")
    a("v_lshrrev_b32 v13, 1, v0"); a("v_and_b32 v14, 1, v0")
    a("v_add_u32 v13, s89, v13"); a("v_subrev_u32 v15, 9, v13"); a("v_min_u32 v13, v13, v15")
    a(f"v_lshlrev_b32 v{VA}, 7, v13"); a(f"v_lshl_add_u32 v{VA}, v14, 4, v{VA}")
    a("s_lshl_b32 s50, s3, 5"); a(f"v_add_u32 v{VA}, s50, v{VA}")
    a("s_waitcnt lgkmcnt(0)")
    vm = Cnt(a, "vmcnt", 63); lg = Cnt(a, "lgkmcnt", 15)
    cur = [None]
    def w_load(kb, i):
        r = RAW[kb % 3] + 4*i
        if cur[0] != kb:
            a(f"s_mul_i32 s54, s{80+kb}, 9216"); cur[0] = kb
        a(f"buffer_load_dwordx4 v[{r}:{r+3}], v{VWI+i}, s[20:23], s54 offen {o('wflag', '')}")
        vm.issue(("W", kb))
    w_ops = lambda kb: [lambda i=i: w_load(kb, i) for i in range(8)]
    def consts():
        srd(24, 8, None, S_BYTES); srd(28, 10, None, S_BYTES); srd(32, 12, None, A_BYTES)
        a(f"buffer_load_dwordx2 v[16:17], v{VS}, s[24:27], 0 offen"); vm.issue("C")
        a(f"buffer_load_dwordx2 v[18:19], v{VS}, s[28:31], 0 offen"); vm.issue("C")
        a(f"buffer_load_dwordx4 v[24:27], v{VA}, s[32:35], 0 offen"); vm.issue("C")
    srd(20, 6, "s47", W_BYTES)
    if o("cfirst", True):
        w_ops(0)[0](); consts()
        for f in w_ops(0)[1:]: f()
    else:
        for f in w_ops(0): f()
        consts()
    ktable()
    for f in w_ops(1)[:PRE]: f()
    a("s_setreg_imm32_b32 hwreg(HW_REG_MODE, 4, 2), 3")
    srd(16, 4, "s46", X_BYTES)
    srd(36, 14, "s48", O_BYTES)
    xdma_setup(VX)
    a("v_lshrrev_b32 v13, 3, v10"); a("v_lshlrev_b32 v13, 12, v13")
    a("v_and_b32 v14, 1, v10"); a("v_lshl_add_u32 v13, v14, 10, v13")
    a("v_and_b32 v15, 6, v10"); a("v_add_u32 v15, v15, v14")
    a("s_and_b32 s50, s3, 1"); a("s_lshl_b32 s50, s50, 1"); a("v_add_u32 v20, s50, v11")
    a("v_lshl_add_u32 v15, v20, 4, v15"); a("v_lshl_add_u32 v13, v15, 4, v13")
    a("s_lshr_b32 s50, s3, 1"); a("s_lshl_b32 s50, s50, 11")
    a(f"v_add_u32 v{VWR0}, s50, v13"); a(f"v_xor_b32 v{VWR1}, 16, v{VWR0}")
    a("v_lshrrev_b32 v13, 4, v0"); a("s_lshl_b32 s50, s3, 2"); a("v_add_u32 v13, s50, v13")
    a("v_and_b32 v14, 15, v0"); a("v_and_b32 v15, 7, v13"); a("v_xor_b32 v15, v15, v14")
    a(f"v_lshlrev_b32 v{VOR}, 8, v13"); a(f"v_lshl_add_u32 v{VOR}, v15, 4, v{VOR}")
    a(f"v_mul_u32_u24 v{VOS}, 9216, v13"); a(f"v_lshl_add_u32 v{VOS}, v14, 4, v{VOS}")
    a(f"s_add_u32 s50, s53, {ATAB}")
    a("v_min_u32 v22, 31, v0"); a("v_lshlrev_b32 v22, 5, v22"); a("v_add_u32 v22, s50, v22")
    a(f"v_lshlrev_b32 v{VAR}, 5, v11"); a(f"v_add_u32 v{VAR}, s50, v{VAR}")
    VCP = 30
    a("s_getpc_b64 s[90:91]")
    a.label("L_pc")
    a(f"s_sub_u32 s90, s90, L_pc-{NAME}_kernel"); a("s_subb_u32 s91, s91, 0")
    a("s_lshl_b32 s52, s41, 2"); a("s_add_u32 s52, s52, s3"); a("s_mul_i32 s52, s52, CPL*64")
    a(f"v_min_u32 v{VCP}, CPL-1, v0"); a(f"v_lshlrev_b32 v{VCP}, 6, v{VCP}"); a(f"v_add_u32 v{VCP}, s52, v{VCP}")
    a(f"v_min_u32 v{VCP}, L_end-{NAME}_kernel, v{VCP}")
    def ctouch():
        a("s_mov_b64 exec, 15")
        a(f"global_load_dword v{VCP+1}, v{VCP}, s[90:91]"); vm.issue("T")
        a("s_mov_b64 exec, -1")
    CT = o("ct", [-1])
    if -1 in CT: ctouch()
    vm.wait("C")
    for i in range(4):
        a(f"v_lshlrev_b32 v{AF[0]+2*i}, 16, v{24+i}"); a(f"v_and_b32 v{AF[0]+2*i+1}, 0xffff0000, v{24+i}")
    a("s_mov_b32 s50, 0x58000000")
    for i in range(8): a(f"v_mul_f32 v{AF[0]+i}, s50, v{AF[0]+i}")
    a(f"ds_write_b128 v22, v[{AF[0]}:{AF[0]+3}]"); a(f"ds_write_b128 v22, v[{AF[0]+4}:{AF[0]+7}] offset:16")
    for i in range(2):
        a(f"v_lshlrev_b32 v{SC+2*i}, 16, v{16+i}"); a(f"v_and_b32 v{SC+2*i+1}, 0xffff0000, v{16+i}")
        a(f"v_lshlrev_b32 v{NZ+2*i}, 16, v{18+i}"); a(f"v_and_b32 v{NZ+2*i+1}, 0xffff0000, v{18+i}")
    a("s_mov_b32 s50, 0xa7000000")
    a("s_mov_b32 s51, 0x71800000")
    for e in range(4):
        a(f"v_mul_f32 v{NZ+e}, v{NZ+e}, v{SC+e}"); a(f"v_mul_f32 v{NZ+e}, s50, v{NZ+e}"); a(f"v_mul_f32 v{SC+e}, s51, v{SC+e}")
    a("s_waitcnt lgkmcnt(0)")
    def a_read(kb):
        r = AF[kb & 1]
        a(f"ds_read_b128 v[{r}:{r+3}], v{VAR} offset:{kb*64}"); a(f"ds_read_b128 v[{r+4}:{r+7}], v{VAR} offset:{kb*64+16}")
        lg.issue(("a", kb)); lg.issue(("a", kb))
    a_read(0)
    def convert(kb, fillers, prebar=None):
        R = RAW[kb % 3]; A = AF[kb & 1]
        steps = []
        def wr(e):
            a(f"ds_write_b128 v{VWR1 if e & 1 else VWR0}, v[{WO+4*e}:{WO+4*e+3}] offset:{(kb&1)*16384 + (e>>1)*128}"); lg.issue("w")
        for e in range(4):
            for hf in range(2):
                def st(e=e, hf=hf):
                    if not o("noconv"):
                        if o("al", True): a(".p2align 3")
                        for i in range(4*hf, 4*hf+4): a(f"v_fma_f32 v{R+4*i+e}, v{R+4*i+e}, v{SC+e}, v{NZ+e}")
                        for i in range(4*hf, 4*hf+4): a(f"v_mul_f32 v{R+4*i+e}, v{R+4*i+e}, v{A+i}")
                        for m in (2*hf, 2*hf+1): a(f"v_cvt_pk_bf16_f32 v{WO+4*e+m}, v{R+8*m+e}, v{R+8*m+4+e}")
                    if e == 0 and hf == 1 and prebar is not None: prebar()
                    if hf == 1 and (WRM == "spread" or kb in (0, 8)): wr(e)
                steps.append(st)
        vm.wait(("W", kb))
        stamp(LS, f"w{kb}")
        lg.wait(("a", kb))
        if kb < 8 and prebar is None: a_read(kb+1)
        nf, ns = len(fillers), len(steps); fi = 0
        for si, s in enumerate(steps):
            s()
            stamp(LS, f"s{kb}_{si}")
            while fi < min(nf, (si+1)*nf//ns + (1 if nf else 0)):
                fillers[fi](); fi += 1
        while fi < nf:
            fillers[fi](); fi += 1
        stamp(LS, f"f{kb}")
        if not (WRM == "spread" or kb in (0, 8)):
            for e in range(4): wr(e)
    stq = []; stn = [0]
    def fetch_tiles(lst):
        for (slot, row0, half) in lst:
            r = STB + 4*(stn[0] % STN); stn[0] += 1
            a(f"ds_read_b128 v[{r}:{r+3}], v{VOR} offset:{slot*4096}"); lg.issue(("o", r))
            stq.append((r, row0, half))
    def do_stores(n):
        for _ in range(min(n, len(stq))):
            r, row0, half = stq.pop(0)
            lg.wait(("o", r))
            if o("nost"): continue
            if half:
                lab[0] += 1
                a("s_cmp_eq_u32 s45, 6"); a("s_cselect_b32 s50, 2, 1"); a("s_cmp_ge_u32 s3, s50"); a(f"s_cbranch_scc1 L_sk{lab[0]}")
            a(f"s_mov_b32 s52, {row0*9216}")
            a(f"buffer_store_dwordx4 v[{r}:{r+3}], v{VOS}, s[36:39], s52 offen {STFLAG if n != 99 else o('lastflag', STFLAG)}")
            if half: a.label(f"L_sk{lab[0]}")
            vm.issue("S", optional=half)
    def bar(n):
        stamp(LS, f"a{n}")
        if lg.ops: lg.wait_all()
        a("s_barrier")
        stamp(LS, f"b{n}")
    stamp(LS, "s")
    for n in range(9):
        fill = w_ops(n+2) if n < 7 else []
        if n == 0: fill = w_ops(1)[PRE:] + fill
        SU = o("su", 1)
        if SU == 1:
            if n == 0: fill = w_ops(1)[PRE:]
            if n == 1: fill = w_ops(2) + w_ops(3)[:4]
            if n == 2: fill = w_ops(3)[4:] + w_ops(4)
        elif SU == 2:
            if n == 0: fill = w_ops(1)[PRE:] + w_ops(2)[:4]
            if n == 1: fill = w_ops(2)[4:] + w_ops(3)[:4]
            if n == 2: fill = w_ops(3)[4:] + w_ops(4)[:6]
            if n == 3: fill = w_ops(4)[6:] + w_ops(5)
        elif SU == 3:
            if n == 0: fill = w_ops(1)[PRE:]
            if n == 1: fill = w_ops(2)
            if n == 2: fill = w_ops(3) + w_ops(4)[:3]
            if n == 3: fill = w_ops(4)[3:] + w_ops(5)[:6]
            if n == 4: fill = w_ops(5)[6:] + w_ops(6)
        if PBY == "L" and n == 7: fill = p_ops(0, vm, VX)
        if PBY in ("L", "M") and n == 8: fill = [lambda: None, lambda: None] + half_ops(1, 0, vm, VX)
        if n in CT: fill = fill + [ctouch]
        RA = o("ra", 2)
        if RA and n >= RA:
            def pb(n=n):
                bar(n-1)
                if n < 8: a_read(n+1)
            convert(n, fill, prebar=pb)
        else:
            convert(n, fill)
        stamp(LS, f"c{n}")
        pad(f"L{n}")
        if not RA or n < RA-1 or n == 8: bar(n)
    for f in half_ops(1, 1, vm, VX): f()
    preg = lambda m: 32 + 36*(m-2)
    def preg_ops(m):
        def piece(kb):
            a(f"s_add_u32 s52, s{80+kb}, {(16*(F+2*m))*1152}")
            r = preg(m) + 4*kb
            a(f"buffer_load_dwordx4 v[{r}:{r+3}], v{VX}, s[16:19], s52 offen")
            vm.issue(("P", m))
        return [lambda kb=kb: piece(kb) for kb in range(9)]
    VXW = 28
    a(f"v_lshlrev_b32 v{VXW}, 4, v0"); a(f"v_add_u32 v{VXW}, s55, v{VXW}")
    a(f"v_add_u32 v{VXW+1}, {pslot(3)}, v{VXW}"); a(f"v_add_u32 v{VXW}, {pslot(2)}, v{VXW}")
    def pw_ops(m):
        def w(kb):
            vm.wait(("P", m))
            if o("nopw"): return
            r = preg(m) + 4*kb
            a(f"ds_write_b128 v{VXW + m - 2}, v[{r}:{r+3}] offset:{kb*2048}"); lg.issue("px")
        return [lambda kb=kb: w(kb) for kb in range(9)]
    def mix(l1, l2):
        r = []; i = j = 0
        while i < len(l1) or j < len(l2):
            if j >= len(l2) or (i < len(l1) and i*len(l2) <= j*len(l1)): r.append(l1[i]); i += 1
            else: r.append(l2[j]); j += 1
        return r
    STB = 104; STN = 36
    P3B = o("p3b", False)
    for f in preg_ops(2) + (preg_ops(3) if P3B else []): f()
    vm.wait(("P", 0))
    bar(9)
    SP = o("sp", [5, 7, 2, 2])
    p1t = lambda st_: [(p1_out[t], trow(t), t == F) for t in p1_order if wstage[t] == st_]
    p2t = lambda m: [(p2slot(m, b), prow(m, b), False) for b in range(2)]
    st_ops = lambda n: [lambda: do_stores(1) for _ in range(n)]
    fetch_tiles(p1t(8))
    if not P3B:
        for f in preg_ops(3): f()
    vm.wait(("P", 1))
    pw2 = pw_ops(2); N9 = o("pw9", 0)
    for f in mix(st_ops(SP[0]), pw2[:N9]): f()
    bar(10)
    pt = lambda m, b: (p2slot(m, b), prow(m, b), False)
    fetch_tiles(p1t(9) + [pt(0, 0)])
    for f in mix(st_ops(SP[1]), pw2[N9:]): f()
    bar(11)
    fetch_tiles([pt(0, 1), pt(1, 0)])
    for f in mix(st_ops(SP[2]), pw_ops(3)): f()
    bar(12)
    fetch_tiles([pt(1, 1), pt(2, 0)]); do_stores(SP[3])
    bar(13)
    fetch_tiles([pt(2, 1), pt(3, 0)]); do_stores(99)
    if STAMP:
        a("s_waitcnt vmcnt(0)"); a("s_add_u32 s3, s3, 4"); a("s_branch L_stamp")
    else:
        a("s_endpgm")

    a.label("L_compute")
    WP = 112; ACC = 24; FR1 = [8, 12, 16, 20]
    AC0, AC1, B0, B1, VO, CVX = 2, 3, 4, 5, 6, 7
    vc = Cnt(a, "vmcnt", 63)
    xdma_setup(CVX)
    ktable()
    if o("x2t", False):
        a("s_lshl_b32 s50, s44, 5"); a("s_lshl_b32 s51, s3, 3"); a("s_add_u32 s50, s50, s51"); a("v_add_u32 v8, s50, v0")
        a("v_mul_u32_u24 v9, 7282, v8"); a("v_lshrrev_b32 v9, 16, v9"); a("v_mul_u32_u24 v10, 9, v9"); a("v_sub_u32 v10, v8, v10")
        a("v_add_u32 v9, 160, v9"); a("v_mul_u32_u24 v9, 1152, v9"); a("v_lshl_add_u32 v9, v10, 7, v9")
        a("v_cmp_gt_u32 vcc, 8, v0"); a("v_mov_b32 v10, 0x7fffffff"); a("s_nop 0"); a("v_cndmask_b32 v9, v10, v9, vcc")
    a("s_waitcnt lgkmcnt(0)")
    srd(16, 4, "s46", X_BYTES)
    for f in x1_ops(0, vc, CVX): f()
    if o("x2t", False):
        a("buffer_load_dword v254, v9, s[16:19], 0 offen"); vc.issue("T")
    a("v_and_b32 v10, 15, v0"); a("v_lshrrev_b32 v11, 4, v0")
    a("v_lshrrev_b32 v12, 1, v10"); a("v_xor_b32 v12, v12, v11")
    a(f"v_lshlrev_b32 v{AC0}, 7, v10"); a(f"v_lshl_add_u32 v{AC0}, v12, 4, v{AC0}")
    a(f"v_add_u32 v{AC0}, {slot1(0)}, v{AC0}"); a(f"v_xor_b32 v{AC1}, 64, v{AC0}")
    a("v_and_b32 v12, 2, v10"); a("v_lshlrev_b32 v12, 2, v12")
    a("v_lshrrev_b32 v13, 2, v10"); a("v_lshl_add_u32 v12, v13, 1, v12")
    a("v_and_b32 v13, 1, v10"); a("v_add_u32 v12, v12, v13")
    a("v_lshl_add_u32 v12, v11, 4, v12")
    a("s_lshl_b32 s50, s3, 12")
    a(f"v_lshlrev_b32 v{B0}, 4, v12"); a(f"v_add_u32 v{B0}, s50, v{B0}"); a(f"v_xor_b32 v{B1}, 16, v{B0}")
    a("s_lshl_b32 s50, s3, 2"); a("v_add_u32 v12, s50, v11")
    a("v_and_b32 v13, 7, v10"); a("v_xor_b32 v12, v12, v13")
    a(f"v_lshlrev_b32 v{VO}, 8, v10"); a(f"v_lshl_add_u32 v{VO}, v12, 4, v{VO}")
    a("v_mul_u32_u24 v1, 9216, v10"); a("v_lshl_add_u32 v1, v11, 4, v1")
    a("s_lshl_b32 s50, s3, 6"); a("v_add_u32 v1, s50, v1")
    X1P = o("x1p", "mid")
    if X1P == "pro":
        for f in x1_ops(1, vc, CVX): f()
    srd(36, 14, "s48", O_BYTES)
    lc = Cnt(a, "lgkmcnt", 15)
    wreg = lambda ks, c: WP + 8*ks + 4*c
    def mfma1(acc, ks, c, fr, first):
        src = "0" if first else f"v[{acc+4*c}:{acc+4*c+3}]"
        a(f"v_mfma_f32_16x16x32_bf16 v[{acc+4*c}:{acc+4*c+3}], v[{wreg(ks,c)}:{wreg(ks,c)+3}], v[{fr}:{fr+3}], {src}")
    cvt1 = lambda dst, acc, m: a(f"v_cvt_pk_bf16_f32 v{dst+m}, v{acc+2*m}, v{acc+2*m+1}")
    if o("zero", True):
        a("v_mov_b32 v8, 0"); a("v_mov_b32 v9, 0"); a("v_mov_b32 v10, 0"); a("v_mov_b32 v11, 0")
        a(f"s_mul_i32 s50, s3, {S1}"); a(f"s_cmp_eq_u32 s3, 3"); a(f"s_cselect_b32 s50, 0, s50"); a(f"s_add_u32 s50, s50, {X1 + F*2048 + 1024}")
        a("v_lshlrev_b32 v12, 4, v0"); a("v_add_u32 v12, s50, v12")
        a("ds_write_b128 v12, v[8:11]"); a("s_waitcnt lgkmcnt(0)")
    a("s_mov_b32 s90, 0x00ff00ff"); a("s_mov_b32 s91, 0x00ff00ff")
    def epi_wr(src, off, half=False, areg=VO):
        if half: a("s_and_saveexec_b64 s[96:97], s[90:91]")
        a(f"ds_write_b128 v{areg}, v[{src}:{src+3}] offset:{off}"); lc.issue("ow")
        if half: a("s_mov_b64 exec, s[96:97]")
    cvt_ops = lambda dst, acc: [lambda m=m: cvt1(dst, acc, m) for m in range(4)]
    def epi_ops(acc, slot, half=False):
        return cvt_ops(acc, acc) + [lambda: epi_wr(acc, slot*4096, half)]
    if PADS:
        for w_ in range(min(4, len(PADS))):
            a(f"s_cmp_eq_u32 s3, {w_}"); a(f"s_cbranch_scc1 L_pad{w_}")
        a.label("L_warm_ret")
    DRY = o("dry", None)
    if DRY is not None:
        a("s_mov_b64 exec, 0"); a("s_branch L_dry")
        a.label("L_dry_ret")
        a("s_mov_b64 exec, -1")
    def cbar(name):
        if DRY is not None:
            lab[0] += 1
            a(f"s_cbranch_execz L_nb{lab[0]}"); a("s_barrier"); a.label(f"L_nb{lab[0]}")
        else: a("s_barrier")
    vc.wait(["T", ("X", 0)])
    if X1P == "mid":
        for f in x1_ops(1, vc, CVX): f()
    H1 = 3
    EXT = [wreg(16, 0), wreg(16, 1), wreg(17, 0), wreg(17, 1)]
    tiles = p1_order
    nj = 2*len(tiles)
    def bufs(kb):
        if kb < 7: seq = [(FR1 + EXT)[(kb*nj + j) % 8] for j in range(nj)]
        elif kb == 7:
            seq = [(FR1 + EXT)[(kb*nj + j) % 8] if j < nj - 8 else None for j in range(nj)]
            prev = seq[nj-16:nj-8]
            seq[nj-8:] = [r for r in prev if r in EXT] + [r for r in prev if r in FR1]
        else:
            last = bufs(7)[-4:]
            seq = [last[j % 4] for j in range(nj)]
        return seq
    held = []; free_at = {}; done = [-1]
    pq = (p_ops(0, vc, CVX) if PBY != "L" else []) + (half_ops(1, 0, vc, CVX) if PBY == "C" else [])
    PST = o("pst", {4: 2, 5: 3, 6: 4, 7: 5}) if PBY == "C" else ({7: 9} if PBY == "M" else {})
    for kb in range(9):
        stamp(CS, f"a{kb}")
        pad(f"C{kb}")
        a("s_barrier")
        if kb == DRY: a.label("L_dry")
        stamp(CS, f"b{kb}")
        xo = x1_ops(kb+2, vc, CVX) if kb <= 6 else []
        if kb == 0 and X1P == "late":
            for f in x1_ops(1, vc, CVX): f()
        po = [pq.pop(0) for _ in range(PST.get(kb, 0))]
        jobs = [(t, s) for t in tiles for s in range(2)]
        bf = bufs(kb)
        nxt = [0]
        def rd():
            j = nxt[0]
            if j >= nj: return False
            fr = bf[j]
            if free_at.get(fr, -1) > done[0]: return False
            if j - (done[0] + 1 - kb*nj) >= 6: return False
            t, s = jobs[j]
            a(f"ds_read_b128 v[{fr}:{fr+3}], v{AC1 if s else AC0} offset:{t*2048}"); lc.issue(("a", kb, j))
            free_at[fr] = kb*nj + j; nxt[0] += 1
            return True
        wq = [(s, c) for s in range(2) for c in range(2)]
        def wrd():
            s, c = wq.pop(0); r = wreg(2*kb+s, c)
            a(f"ds_read_b128 v[{r}:{r+3}], v{B1 if c else B0} offset:{(kb&1)*16384 + s*2048 + c*1024}"); lc.issue(("w", kb, s))
        wrd(); wrd(); rd()
        for (job, fr, gj) in held:
            job(fr, 0)
            if wq: wrd()
            else: rd()
            job(fr, 1); done[0] = gj
            if wq: wrd()
            else: rd()
        while wq: wrd()
        while rd(): pass
        if o("xpos", "fast") == "start":
            while xo: xo.pop(0)()
        fillq = []
        for j in range(nj - H1):
            t, s = jobs[j]
            if j % 2 == 0 or kb == 8: lc.wait([("a", kb, min(j + (1 if kb < 8 else 0), nxt[0]-1)), ("w", kb, 1 if kb < 8 else s)])
            sk = o("nomf") and kb < 8
            if not sk: mfma1(ACC + 8*t, 2*kb+s, 0, bf[j], kb == 0 and s == 0)
            rd()
            if not sk: mfma1(ACC + 8*t, 2*kb+s, 1, bf[j], kb == 0 and s == 0)
            done[0] = kb*nj + j
            if nxt[0] - j - 1 < 5 and kb != 8: rd()
            if j % o("xsp", 2) == 1:
                if xo: xo.pop(0)()
                elif po: po.pop(0)()
            if kb == 8:
                if j >= 5 and j % 2 == 1 and wstage[jobs[j-4][0]] == 8:
                    tt = jobs[j-4][0]
                    fillq += epi_ops(ACC + 8*tt, p1_out[tt], half=(tt == F))
                for _ in range(o("e8", 2)):
                    if fillq: fillq.pop(0)()
        while rd(): pass
        assert nxt[0] == nj, (kb, nxt[0])
        while fillq: fillq.pop(0)()
        while xo: xo.pop(0)()
        while po: po.pop(0)()
        nb = slot1(kb+1) if kb < 8 else pslot(0)
        d = nb - slot1(kb)
        lc.wait_all()
        op = "v_add_u32" if d >= 0 else "v_subrev_u32"
        a(f"{op} v{AC0}, {abs(d)}, v{AC0}"); a(f"{op} v{AC1}, {abs(d)}, v{AC1}")
        if kb < 8: vc.wait(("X", kb+1))
        elif DRY == 8:
            lab[0] += 1
            a(f"s_cbranch_execz L_nb{lab[0]}"); vc.wait([("P", 0), ("P", 1)]); a.label(f"L_nb{lab[0]}")
        else: vc.wait([("P", 0), ("P", 1)])
        held = [((lambda fr, c, t=jobs[j][0], s=jobs[j][1], kb=kb: mfma1(ACC + 8*t, 2*kb+s, c, fr, kb == 0 and s == 0)), bf[j], kb*nj + j) for j in range(nj-H1, nj)]
    assert not pq
    held = [(job, fr) for (job, fr, gj) in held]
    XACC, YACC = ACC, ACC + 8
    PK = ACC + 36
    NB = 9; HOLD = 3; WE = o("we", 3)
    heldregs = [fr for (_, fr) in held]
    ring = [r for r in FR1 if r not in heldregs] + [ACC+16, ACC+20, ACC+24, ACC+28, ACC+32] + heldregs
    def pair_body(pi):
        nonlocal held
        jobs = [(b, ks) for b in range(2) for ks in range(18)]
        def rd(j):
            b, ks = jobs[j]; fr = ring[j % NB]
            a(f"ds_read_b128 v[{fr}:{fr+3}], v{AC1 if ks & 1 else AC0} offset:{b*18432 + (ks>>1)*2048}"); lc.issue(("p", j))
        pre = NB - HOLD
        hm_ = [(job, fr, c) for (job, fr) in held for c in range(2)]
        rd(0); rd(1); nxt = 2
        for (job, fr, c) in hm_:
            job(fr, c)
            if nxt < pre: rd(nxt); nxt += 1
        fillq = []
        for j in range(36 - HOLD):
            b, ks = jobs[j]
            if j % WE == 0: lc.wait(("p", min(j + WE - 1, 35)))
            acc = YACC if b else XACC
            mfma1(acc, ks, 0, ring[j % NB], ks == 0)
            if nxt < 36 and nxt - NB < j: rd(nxt); nxt += 1
            mfma1(acc, ks, 1, ring[j % NB], ks == 0)
            if o("deep", True) and nxt < 36 and nxt - NB <= j and nxt - j - 1 < NB - 1 and not fillq: rd(nxt); nxt += 1
            if j == 1:
                if pi > 0: fillq += cvt_ops(YACC, YACC) + [lambda: epi_wr(YACC, 0, areg=B0)]
                else:
                    for tt in p1_order:
                        if wstage[tt] == 9: fillq += epi_ops(ACC + 8*tt, p1_out[tt], half=(tt == F))
            if j == 22: fillq += cvt_ops(XACC, XACC) + [(lambda: epi_wr(XACC, 4096, areg=B0)) if pi > 0 else (lambda: epi_wr(XACC, 11*4096))]
            if o("noepi"): fillq = []
            if fillq:
                fillq.pop(0)()
                if len(fillq) > 32 - j: fillq.pop(0)()
        assert not fillq and nxt == 36, (len(fillq), nxt)
        lc.wait_all()
        held = [((lambda fr, c, ks=jobs[j][1]: mfma1(YACC, ks, c, fr, False)), ring[j % NB]) for j in range(36-HOLD, 36)]
    stamp(CS, "a9")
    pad("C9")
    if DRY == 9:
        a("s_barrier"); a.label("L_dry")
    else: cbar(9)
    stamp(CS, "b9")
    pair_body(0)
    stamp(CS, "a10")
    pad("C10")
    a(f"s_mov_b32 s40, {(-2*PSTR) & 0xffffffff}")
    a(f"v_add_u32 v{B0}, {6*4096}, v{VO}")
    a("s_mov_b32 s42, 1")
    for it in range(3 if o("unroll") else 1):
        if not o("unroll"): a.label("L_p2")
        a(f"v_add_u32 v{AC0}, s40, v{AC0}"); a(f"v_add_u32 v{AC1}, s40, v{AC1}")
        a(f"s_mov_b32 s40, {PSTR}")
        a(f"v_xor_b32 v{B0}, 8192, v{B0}")
        cbar(10)
        if o("unroll"): stamp(CS, f"b{10+it}")
        lc.ops = []
        pair_body(1)
        if o("unroll"): pad(f"C{11+it}")
    if not o("unroll"):
        if DRY is not None: a("s_cbranch_execz L_dry_ret")
        a("s_add_u32 s42, s42, 1"); a(f"s_cmp_lt_u32 s42, {NP}"); a("s_cbranch_scc1 L_p2")
    stamp(CS, "a13")
    a("s_barrier")
    stamp(CS, "b13")
    for (job, fr) in held:
        job(fr, 0); job(fr, 1)
    a(f"s_mov_b32 s52, {prow(NP-1, 1)*9216}")
    a("s_nop 6")
    for m in range(4): cvt1(YACC, YACC, m)
    a(f"buffer_store_dwordx4 v[{YACC}:{YACC+3}], v1, s[36:39], s52 offen {o('lastflag', STFLAG)}")
    if STAMP:
        a("s_waitcnt vmcnt(0)")
        a.label("L_stamp")
        a("s_memrealtime s[58:59]"); a(f"{MT} s[98:99]")
        a("s_getreg_b32 s96, hwreg(HW_REG_XCC_ID)"); a("s_getreg_b32 s97, hwreg(HW_REG_HW_ID)")
        a("s_waitcnt lgkmcnt(0)")
        a("s_mov_b32 s92, s98")
        a("s_mov_b32 s84, s56"); a("s_and_b32 s85, s57, 0xffff"); a("s_mov_b32 s86, 0x100000"); a("s_mov_b32 s87, 0x20000")
        a("s_lshl_b32 s98, s2, 3"); a("s_add_u32 s98, s98, s3"); a("s_lshl_b32 s98, s98, 6")
        vals = ["s60", "s58", "s62", "s92"] + [f"s{64+2*i}" for i in range(8)] + ["0", "0x5a5a1234", "s97", "s96"]
        a("v_mov_b32 v1, 0")
        for i, v in enumerate(vals):
            a(f"v_mov_b32 v2, {v}"); a(f"v_cmp_eq_u32 vcc, {i}, v0"); a("s_nop 1"); a("v_cndmask_b32 v1, v1, v2, vcc")
        a("v_lshlrev_b32 v2, 2, v0"); a("v_cmp_gt_u32 vcc, 16, v0"); a("s_and_saveexec_b64 s[100:101], vcc")
        a("buffer_store_dword v1, v2, s[84:87], s98 offen"); a("s_waitcnt vmcnt(0)")
    a.label("L_end")
    a(f".set CPL, (L_end-{NAME}_kernel+8191)/8192")
    open(out, "w").write(wrap(a.text(), (256,1,1), 512, LDS, 256, 102, 256, pre_align=".p2align 12\n"))

def st(*keys): return {k: i for i, k in enumerate(keys)}
if __name__ == "__main__":
    F3 = dict(stamp=True, rt=True, cs=st("b0", "b4", "b8", "b9", "b10", "b11", "b12", "b13"), ls=st("s", "w5", "c5", "b5", "a10", "a11", "a12", "a13"))
    B = dict(wr="spread", xsp=3)
    gen("v15.s", B)
    PD = ["L3", "C4", "C9"]
    F4 = dict(B, stamp=True, unroll=True, cs=st("b8", "a9", "b9", "a10", "b10", "b11", "b12", "a13"), ls=st("a8", "a9", "a10", "a11", "a12", "a13"))
    gen("v15a.s", dict(F4))
    gen("v15b.s", dict(F4, pads=PD + ["C12"]))
    F5 = dict(B, stamp=True, rt=True, cs=st("b0", "b2", "b4", "b8", "b9", "a10", "a13"), ls=st("a8", "a9", "a10", "a11", "a12", "a13"))
    gen("v15d.s", dict(F5))
    gen("v15e.s", dict(F5, pads=PD))
    gen("v15f.s", dict(F5, pads=PD, ct=[]))
    gen("v15g.s", dict(F5, pads=PD, unroll=True))
    gen("h15a.s", dict(B))
    gen("h15b.s", dict(B, pads=PD))
```

```python
import sys
from common import *
from gen_v1 import Cnt

def gen(out, opts):
    o = lambda k, d=None: opts.get(k, d)
    STAMP = o("stamp", False); STFLAG = o("stflag", "sc1")
    MT = "s_memrealtime" if o("rt") else "s_memtime"
    WRM = o("wr", "end"); PRE = o("pre", 4)
    LS = o("ls", {}); CS = o("cs", {})
    a = Asm()
    F = 10; NP = 4
    X1 = 12*4096; S1 = 22528; PSTR = 38912
    slot1 = lambda u: X1 + (u % 3)*S1
    pslot = lambda m: X1 + ((m+2) % 3)*PSTR
    LDS = 163840
    ATAB = 8*4096
    p1_order = [0, 1, 2, 3, 4, F, 5, 6, 7, 8, 9]
    E8 = o("e8n", 5)
    wstage = {t: (8 if n < E8 else 9) for n, t in enumerate(p1_order)}
    p1_out = {}
    f8 = [4, 5, 6, 7, 8]; f9 = [0, 1, 2, 3, 9, 10]
    for t in p1_order: p1_out[t] = (f8 if wstage[t] == 8 else f9).pop(0)
    p2slot = lambda m, b: 11 if (m, b) == (0, 0) else 4 + (2*m + b - 1) % 4
    trow = lambda t: 288 if t == F else 16*t
    prow = lambda m, b: 16*(F + 2*m + b)
    lab = [0]
    PADS = o("pads", [])
    def pad(key):
        if key in PADS:
            k = PADS.index(key)
            nxt_ = f"L_pad{k+4}" if k+4 < len(PADS) else "L_warm_ret"
            a(f"s_branch L_pads{k}"); a.label(f"L_pad{k}"); a(f"s_branch {nxt_}"); a.label(f"L_pads{k}")
    def stamp(tab, key):
        if STAMP and key in tab: a(f"{MT} s[{64+2*tab[key]}:{65+2*tab[key]}]")
    def srd(d, lo, off, size):
        if off is None:
            a(f"s_mov_b32 s{d}, s{lo}"); a(f"s_and_b32 s{d+1}, s{lo+1}, 0xffff"); a(f"s_mov_b32 s{d+2}, {size}")
        else:
            a(f"s_add_u32 s{d}, s{lo}, {off}"); a(f"s_addc_u32 s{d+1}, s{lo+1}, 0"); a(f"s_and_b32 s{d+1}, s{d+1}, 0xffff")
            a(f"s_sub_u32 s{d+2}, {size}, {off}")
        a(f"s_mov_b32 s{d+3}, 0x20000")
    def xdma_setup(dst):
        a("v_lshrrev_b32 v13, 3, v0")
        a("s_and_b32 s50, s3, 1"); a("s_lshl_b32 s55, s50, 10"); a("s_lshl_b32 s50, s50, 2")
        a("v_lshrrev_b32 v14, 1, v13"); a("v_add_u32 v14, s50, v14")
        a("v_and_b32 v15, 7, v0"); a("v_xor_b32 v14, v14, v15")
        a("s_lshl_b32 s50, s3, 3"); a("v_add_u32 v13, s50, v13")
        a(f"v_mul_u32_u24 v{dst}, 1152, v13"); a(f"v_lshl_add_u32 v{dst}, v14, 4, v{dst}")
        a("s_lshl_b32 s53, s3, 10")
        a("s_lshr_b32 s50, s3, 1"); a("s_mul_i32 s50, s50, 18432"); a("s_add_u32 s55, s55, s50")
        a("s_sub_u32 s95, 0, s50")
    def ktable():
        for n in range(1, 9):
            a(f"s_add_u32 s{80+n}, s{79+n}, 128"); a(f"s_cmp_eq_u32 s{80+n}, 1152"); a(f"s_cselect_b32 s{80+n}, 0, s{80+n}")
    def x1_ops(kb, vm, VX):
        def piece(j):
            a(f"s_add_u32 m0, s53, {slot1(kb) + j*4096}")
            a(f"s_add_u32 s52, s{80+kb}, {32*j*1152}")
            a(f"buffer_load_dwordx4 v{VX}, s[16:19], s52 offen lds")
            vm.issue(("X", kb))
        def extra():
            lab[0] += 1
            a("s_cmp_lg_u32 s3, 0"); a(f"s_cbranch_scc1 L_sk{lab[0]}")
            a(f"s_mov_b32 m0, {slot1(kb) + F*2048}")
            a(f"s_add_u32 s52, s{80+kb}, {288*1152}")
            a(f"buffer_load_dwordx4 v{VX}, s[16:19], s52 offen lds")
            a.label(f"L_sk{lab[0]}")
            vm.issue(("X", kb), optional=True)
        return [extra] + [lambda j=j: piece(j) for j in range(F//2)]
    def p_ops(m, vm, VX):
        def piece(kb):
            a(f"s_add_u32 m0, s55, {pslot(m) + kb*2048}")
            a(f"s_add_u32 s52, s{80+kb}, {(16*(F+2*m))*1152}")
            a(f"buffer_load_dwordx4 v{VX}, s[16:19], s52 offen lds")
            vm.issue(("P", m))
        return [lambda kb=kb: piece(kb) for kb in range(9)]
    def half_ops(m, b, cnt, VXr):
        def piece(i):
            if i == 4:
                lab[0] += 1
                a("s_cmp_ge_u32 s3, 2"); a(f"s_cbranch_scc1 L_sk{lab[0]}")
            a("s_cmp_ge_u32 s3, 2")
            a(f"s_cselect_b32 s52, s{80+min(2*i+1, 8)}, s{80+2*i}")
            a(f"s_add_u32 m0, s53, {pslot(m) + b*18432 + i*4096}")
            a("s_add_u32 s52, s52, s95")
            a(f"s_add_u32 s52, s52, {16*(F+2*m+b)*1152}")
            a(f"buffer_load_dwordx4 v{VXr}, s[16:19], s52 offen lds")
            if i == 4: a.label(f"L_sk{lab[0]}")
            cnt.issue(("P", m), optional=(i == 4))
        return [lambda i=i: piece(i) for i in range(5)]
    PBY = o("pby", "M")
    if STAMP:
        a("s_memrealtime s[60:61]"); a(f"{MT} s[62:63]")
    a("s_load_dwordx4 s[4:7], s[0:1], 0")
    a("s_load_dwordx4 s[8:11], s[0:1], 16")
    a("s_load_dwordx4 s[12:15], s[0:1], 32")
    if STAMP: a("s_load_dwordx2 s[56:57], s[0:1], 56")
    a("s_and_b32 s40, s2, 7"); a("s_lshr_b32 s41, s2, 3")
    a("s_mul_i32 s42, s40, 63"); a("s_lshr_b32 s43, s42, 1")
    a("s_add_u32 s42, s42, 63"); a("s_lshr_b32 s42, s42, 1")
    a("s_add_u32 s43, s43, s41")
    a("s_cmp_ge_u32 s43, s42"); a("s_cbranch_scc1 L_end")
    a("s_mul_i32 s44, s43, 9363"); a("s_lshr_b32 s44, s44, 16")
    a("s_mul_i32 s50, s44, 7"); a("s_sub_u32 s45, s43, s50")
    a("v_lshrrev_b32 v1, 6, v0"); a("v_and_b32 v0, 63, v0")
    if o("rot", True):
        a("s_sub_u32 s49, s43, s41")
        a("s_max_u32 s49, s49, s50"); a("s_add_u32 s51, s50, 7"); a("s_min_u32 s51, s51, s42")
        a("s_sub_u32 s51, s51, s49")
        a("s_sub_u32 s89, s43, s49"); a("s_mul_i32 s89, s89, 9")
        a("s_movk_i32 s52, 16384"); a("s_cmp_eq_u32 s51, 7"); a("s_cselect_b32 s52, 9363, s52"); a("s_cmp_eq_u32 s51, 3"); a("s_cselect_b32 s52, 21846, s52")
        a("s_mul_i32 s89, s89, s52"); a("s_lshr_b32 s89, s89, 16")
        a(f"s_mul_i32 s52, s40, {o('xm', 1)}"); a("s_add_u32 s89, s89, s52")
        a("s_mul_i32 s49, s89, 7282"); a("s_lshr_b32 s49, s49, 16"); a("s_mul_i32 s49, s49, 9"); a("s_sub_u32 s89, s89, s49")
    else:
        a("s_mov_b32 s89, 0")
    a("v_readfirstlane_b32 s3, v1")
    a("s_lshl_b32 s80, s89, 7")
    a("s_mul_i32 s46, s45, %d" % (292*1152))
    a("s_lshl_b32 s47, s44, 9")
    a("s_mul_i32 s48, s45, %d" % (292*9216)); a("s_lshl_b32 s49, s44, 8"); a("s_add_u32 s48, s48, s49")
    a("s_cmp_ge_u32 s3, 4"); a("s_cbranch_scc0 L_compute")

    a("s_sub_u32 s3, s3, 4")
    VX, VA, VS, VWR0, VWR1, VOR, VOS, VAR = 3, 4, 5, 6, 7, 8, 9, 21
    RAW = [32, 64, 96]; AF = [128, 136]; SC = 144; NZ = 148; WO = 152; VWI = 168; STB, STN = 176, 20
    a("v_and_b32 v10, 31, v0"); a("v_lshrrev_b32 v11, 5, v0")
    a("s_lshl_b32 s50, s3, 1"); a("v_add_u32 v12, s50, v11")
    a("s_mov_b32 s51, %d" % (8*18432))
    a(f"v_mul_lo_u32 v{VWI}, v12, s51"); a(f"v_lshl_add_u32 v{VWI}, v10, 4, v{VWI}")
    for i in range(1, 8): a(f"v_add_u32 v{VWI+i}, {i*18432}, v{VWI}")
    a(f"v_lshlrev_b32 v{VS}, 3, v10"); a(f"v_add_u32 v{VS}, s49, v{VS}")
    a("v_lshrrev_b32 v13, 1, v0"); a("v_and_b32 v14, 1, v0")
    a("v_add_u32 v13, s89, v13"); a("v_subrev_u32 v15, 9, v13"); a("v_min_u32 v13, v13, v15")
    a(f"v_lshlrev_b32 v{VA}, 7, v13"); a(f"v_lshl_add_u32 v{VA}, v14, 4, v{VA}")
    a("s_lshl_b32 s50, s3, 5"); a(f"v_add_u32 v{VA}, s50, v{VA}")
    a("s_waitcnt lgkmcnt(0)")
    vm = Cnt(a, "vmcnt", 63); lg = Cnt(a, "lgkmcnt", 15)
    cur = [None]
    def w_load(kb, i):
        r = RAW[kb % 3] + 4*i
        if cur[0] != kb:
            a(f"s_mul_i32 s54, s{80+kb}, 9216"); cur[0] = kb
        a(f"buffer_load_dwordx4 v[{r}:{r+3}], v{VWI+i}, s[20:23], s54 offen {o('wflag', '')}")
        vm.issue(("W", kb))
    w_ops = lambda kb: [lambda i=i: w_load(kb, i) for i in range(8)]
    def consts():
        srd(24, 8, None, S_BYTES); srd(28, 10, None, S_BYTES); srd(32, 12, None, A_BYTES)
        a(f"buffer_load_dwordx2 v[16:17], v{VS}, s[24:27], 0 offen"); vm.issue("C")
        a(f"buffer_load_dwordx2 v[18:19], v{VS}, s[28:31], 0 offen"); vm.issue("C")
        a(f"buffer_load_dwordx4 v[24:27], v{VA}, s[32:35], 0 offen"); vm.issue("C")
    srd(20, 6, "s47", W_BYTES)
    if o("cfirst", True):
        w_ops(0)[0](); consts()
        for f in w_ops(0)[1:]: f()
    else:
        for f in w_ops(0): f()
        consts()
    ktable()
    for f in w_ops(1)[:PRE]: f()
    a("s_setreg_imm32_b32 hwreg(HW_REG_MODE, 4, 2), 3")
    srd(16, 4, "s46", X_BYTES)
    srd(36, 14, "s48", O_BYTES)
    xdma_setup(VX)
    a("v_lshrrev_b32 v13, 3, v10"); a("v_lshlrev_b32 v13, 12, v13")
    a("v_and_b32 v14, 1, v10"); a("v_lshl_add_u32 v13, v14, 10, v13")
    a("v_and_b32 v15, 6, v10"); a("v_add_u32 v15, v15, v14")
    a("s_and_b32 s50, s3, 1"); a("s_lshl_b32 s50, s50, 1"); a("v_add_u32 v20, s50, v11")
    a("v_lshl_add_u32 v15, v20, 4, v15"); a("v_lshl_add_u32 v13, v15, 4, v13")
    a("s_lshr_b32 s50, s3, 1"); a("s_lshl_b32 s50, s50, 11")
    a(f"v_add_u32 v{VWR0}, s50, v13"); a(f"v_xor_b32 v{VWR1}, 16, v{VWR0}")
    a("v_lshrrev_b32 v13, 4, v0"); a("s_lshl_b32 s50, s3, 2"); a("v_add_u32 v13, s50, v13")
    a("v_and_b32 v14, 15, v0"); a("v_and_b32 v15, 7, v13"); a("v_xor_b32 v15, v15, v14")
    a(f"v_lshlrev_b32 v{VOR}, 8, v13"); a(f"v_lshl_add_u32 v{VOR}, v15, 4, v{VOR}")
    a(f"v_mul_u32_u24 v{VOS}, 9216, v13"); a(f"v_lshl_add_u32 v{VOS}, v14, 4, v{VOS}")
    a(f"s_add_u32 s50, s53, {ATAB}")
    a("v_min_u32 v22, 31, v0"); a("v_lshlrev_b32 v22, 5, v22"); a("v_add_u32 v22, s50, v22")
    a(f"v_lshlrev_b32 v{VAR}, 5, v11"); a(f"v_add_u32 v{VAR}, s50, v{VAR}")
    VCP = 30
    a("s_getpc_b64 s[90:91]")
    a.label("L_pc")
    a(f"s_sub_u32 s90, s90, L_pc-{NAME}_kernel"); a("s_subb_u32 s91, s91, 0")
    a("s_lshl_b32 s52, s41, 2"); a("s_add_u32 s52, s52, s3"); a("s_mul_i32 s52, s52, CPL*64")
    a(f"v_min_u32 v{VCP}, CPL-1, v0"); a(f"v_lshlrev_b32 v{VCP}, 6, v{VCP}"); a(f"v_add_u32 v{VCP}, s52, v{VCP}")
    a(f"v_min_u32 v{VCP}, L_end-{NAME}_kernel, v{VCP}")
    def ctouch():
        a("s_mov_b64 exec, 15")
        a(f"global_load_dword v{VCP+1}, v{VCP}, s[90:91]"); vm.issue("T")
        a("s_mov_b64 exec, -1")
    CT = o("ct", [-1])
    if -1 in CT: ctouch()
    vm.wait("C")
    for i in range(4):
        a(f"v_lshlrev_b32 v{AF[0]+2*i}, 16, v{24+i}"); a(f"v_and_b32 v{AF[0]+2*i+1}, 0xffff0000, v{24+i}")
    a("s_mov_b32 s50, 0x58000000")
    for i in range(8): a(f"v_mul_f32 v{AF[0]+i}, s50, v{AF[0]+i}")
    a(f"ds_write_b128 v22, v[{AF[0]}:{AF[0]+3}]"); a(f"ds_write_b128 v22, v[{AF[0]+4}:{AF[0]+7}] offset:16")
    for i in range(2):
        a(f"v_lshlrev_b32 v{SC+2*i}, 16, v{16+i}"); a(f"v_and_b32 v{SC+2*i+1}, 0xffff0000, v{16+i}")
        a(f"v_lshlrev_b32 v{NZ+2*i}, 16, v{18+i}"); a(f"v_and_b32 v{NZ+2*i+1}, 0xffff0000, v{18+i}")
    a("s_mov_b32 s50, 0xa7000000")
    a("s_mov_b32 s51, 0x71800000")
    for e in range(4):
        a(f"v_mul_f32 v{NZ+e}, v{NZ+e}, v{SC+e}"); a(f"v_mul_f32 v{NZ+e}, s50, v{NZ+e}"); a(f"v_mul_f32 v{SC+e}, s51, v{SC+e}")
    a("s_waitcnt lgkmcnt(0)")
    def a_read(kb):
        r = AF[kb & 1]
        a(f"ds_read_b128 v[{r}:{r+3}], v{VAR} offset:{kb*64}"); a(f"ds_read_b128 v[{r+4}:{r+7}], v{VAR} offset:{kb*64+16}")
        lg.issue(("a", kb)); lg.issue(("a", kb))
    a_read(0)
    def convert(kb, fillers, prebar=None):
        R = RAW[kb % 3]; A = AF[kb & 1]
        steps = []
        def wr(e):
            a(f"ds_write_b128 v{VWR1 if e & 1 else VWR0}, v[{WO+4*e}:{WO+4*e+3}] offset:{(kb&1)*16384 + (e>>1)*128}"); lg.issue("w")
        for e in range(4):
            for hf in range(2):
                def st(e=e, hf=hf):
                    if not o("noconv"):
                        if o("al", True): a(".p2align 3")
                        for i in range(4*hf, 4*hf+4): a(f"v_fma_f32 v{R+4*i+e}, v{R+4*i+e}, v{SC+e}, v{NZ+e}")
                        for i in range(4*hf, 4*hf+4): a(f"v_mul_f32 v{R+4*i+e}, v{R+4*i+e}, v{A+i}")
                        for m in (2*hf, 2*hf+1): a(f"v_cvt_pk_bf16_f32 v{WO+4*e+m}, v{R+8*m+e}, v{R+8*m+4+e}")
                    if e == 0 and hf == 1 and prebar is not None: prebar()
                    if hf == 1 and (WRM == "spread" or kb in (0, 8)): wr(e)
                steps.append(st)
        vm.wait(("W", kb))
        stamp(LS, f"w{kb}")
        lg.wait(("a", kb))
        if kb < 8 and prebar is None: a_read(kb+1)
        nf, ns = len(fillers), len(steps); fi = 0
        for si, s in enumerate(steps):
            s()
            stamp(LS, f"s{kb}_{si}")
            while fi < min(nf, (si+1)*nf//ns + (1 if nf else 0)):
                fillers[fi](); fi += 1
        while fi < nf:
            fillers[fi](); fi += 1
        stamp(LS, f"f{kb}")
        if not (WRM == "spread" or kb in (0, 8)):
            for e in range(4): wr(e)
    stq = []; stn = [0]
    def fetch_tiles(lst):
        for (slot, row0, half) in lst:
            r = STB + 4*(stn[0] % STN); stn[0] += 1
            a(f"ds_read_b128 v[{r}:{r+3}], v{VOR} offset:{slot*4096}"); lg.issue(("o", r))
            stq.append((r, row0, half))
    def do_stores(n):
        for _ in range(min(n, len(stq))):
            r, row0, half = stq.pop(0)
            lg.wait(("o", r))
            if o("nost"): continue
            if half:
                lab[0] += 1
                a("s_cmp_eq_u32 s45, 6"); a("s_cselect_b32 s50, 2, 1"); a("s_cmp_ge_u32 s3, s50"); a(f"s_cbranch_scc1 L_sk{lab[0]}")
            a(f"s_mov_b32 s52, {row0*9216}")
            a(f"buffer_store_dwordx4 v[{r}:{r+3}], v{VOS}, s[36:39], s52 offen {STFLAG if n != 99 else o('lastflag', STFLAG)}")
            if half: a.label(f"L_sk{lab[0]}")
            vm.issue("S", optional=half)
    def bar(n):
        stamp(LS, f"a{n}")
        if lg.ops: lg.wait_all()
        a("s_barrier")
        stamp(LS, f"b{n}")
    stamp(LS, "s")
    for n in range(9):
        fill = w_ops(n+2) if n < 7 else []
        if n == 0: fill = w_ops(1)[PRE:] + fill
        SU = o("su", 1)
        if SU == 1:
            if n == 0: fill = w_ops(1)[PRE:]
            if n == 1: fill = w_ops(2) + w_ops(3)[:4]
            if n == 2: fill = w_ops(3)[4:] + w_ops(4)
        elif SU == 2:
            if n == 0: fill = w_ops(1)[PRE:] + w_ops(2)[:4]
            if n == 1: fill = w_ops(2)[4:] + w_ops(3)[:4]
            if n == 2: fill = w_ops(3)[4:] + w_ops(4)[:6]
            if n == 3: fill = w_ops(4)[6:] + w_ops(5)
        elif SU == 3:
            if n == 0: fill = w_ops(1)[PRE:]
            if n == 1: fill = w_ops(2)
            if n == 2: fill = w_ops(3) + w_ops(4)[:3]
            if n == 3: fill = w_ops(4)[3:] + w_ops(5)[:6]
            if n == 4: fill = w_ops(5)[6:] + w_ops(6)
        if PBY == "L" and n == 7: fill = p_ops(0, vm, VX)
        if PBY in ("L", "M") and n == 8: fill = [lambda: None, lambda: None] + half_ops(1, 0, vm, VX)
        if n in CT: fill = fill + [ctouch]
        RA = o("ra", 2)
        if RA and n >= RA:
            def pb(n=n):
                bar(n-1)
                if n < 8: a_read(n+1)
            convert(n, fill, prebar=pb)
        else:
            convert(n, fill)
        stamp(LS, f"c{n}")
        pad(f"L{n}")
        if not RA or n < RA-1 or n == 8: bar(n)
    for f in half_ops(1, 1, vm, VX): f()
    preg = lambda m: 32 + 36*(m-2)
    def preg_ops(m):
        def piece(kb):
            a(f"s_add_u32 s52, s{80+kb}, {(16*(F+2*m))*1152}")
            r = preg(m) + 4*kb
            a(f"buffer_load_dwordx4 v[{r}:{r+3}], v{VX}, s[16:19], s52 offen")
            vm.issue(("P", m))
        return [lambda kb=kb: piece(kb) for kb in range(9)]
    VXW = 28
    a(f"v_lshlrev_b32 v{VXW}, 4, v0"); a(f"v_add_u32 v{VXW}, s55, v{VXW}")
    a(f"v_add_u32 v{VXW+1}, {pslot(3)}, v{VXW}"); a(f"v_add_u32 v{VXW}, {pslot(2)}, v{VXW}")
    def pw_ops(m):
        def w(kb):
            vm.wait(("P", m))
            if o("nopw"): return
            r = preg(m) + 4*kb
            a(f"ds_write_b128 v{VXW + m - 2}, v[{r}:{r+3}] offset:{kb*2048}"); lg.issue("px")
        return [lambda kb=kb: w(kb) for kb in range(9)]
    def mix(l1, l2):
        r = []; i = j = 0
        while i < len(l1) or j < len(l2):
            if j >= len(l2) or (i < len(l1) and i*len(l2) <= j*len(l1)): r.append(l1[i]); i += 1
            else: r.append(l2[j]); j += 1
        return r
    STB = 104; STN = 36
    P3B = o("p3b", False)
    for f in preg_ops(2) + (preg_ops(3) if P3B else []): f()
    vm.wait(("P", 0))
    bar(9)
    SP = o("sp", [5, 7, 2, 2])
    p1t = lambda st_: [(p1_out[t], trow(t), t == F) for t in p1_order if wstage[t] == st_]
    p2t = lambda m: [(p2slot(m, b), prow(m, b), False) for b in range(2)]
    st_ops = lambda n: [lambda: do_stores(1) for _ in range(n)]
    fetch_tiles(p1t(8))
    if not P3B:
        for f in preg_ops(3): f()
    vm.wait(("P", 1))
    pw2 = pw_ops(2); N9 = o("pw9", 0)
    for f in mix(st_ops(SP[0]), pw2[:N9]): f()
    bar(10)
    pt = lambda m, b: (p2slot(m, b), prow(m, b), False)
    fetch_tiles(p1t(9) + [pt(0, 0)])
    for f in mix(st_ops(SP[1]), pw2[N9:]): f()
    bar(11)
    fetch_tiles([pt(0, 1), pt(1, 0)])
    for f in mix(st_ops(SP[2]), pw_ops(3)): f()
    bar(12)
    fetch_tiles([pt(1, 1), pt(2, 0)]); do_stores(SP[3])
    bar(13)
    fetch_tiles([pt(2, 1), pt(3, 0)]); do_stores(99)
    if STAMP:
        a("s_waitcnt vmcnt(0)"); a("s_add_u32 s3, s3, 4"); a("s_branch L_stamp")
    else:
        a("s_endpgm")

    a.label("L_compute")
    WP = 112; ACC = 24; FR1 = [8, 12, 16, 20]
    AC0, AC1, B0, B1, VO, CVX = 2, 3, 4, 5, 6, 7
    vc = Cnt(a, "vmcnt", 63)
    xdma_setup(CVX)
    ktable()
    if o("x2t", False):
        a("s_lshl_b32 s50, s44, 5"); a("s_lshl_b32 s51, s3, 3"); a("s_add_u32 s50, s50, s51"); a("v_add_u32 v8, s50, v0")
        a("v_mul_u32_u24 v9, 7282, v8"); a("v_lshrrev_b32 v9, 16, v9"); a("v_mul_u32_u24 v10, 9, v9"); a("v_sub_u32 v10, v8, v10")
        a("v_add_u32 v9, 160, v9"); a("v_mul_u32_u24 v9, 1152, v9"); a("v_lshl_add_u32 v9, v10, 7, v9")
        a("v_cmp_gt_u32 vcc, 8, v0"); a("v_mov_b32 v10, 0x7fffffff"); a("s_nop 0"); a("v_cndmask_b32 v9, v10, v9, vcc")
    a("s_waitcnt lgkmcnt(0)")
    srd(16, 4, "s46", X_BYTES)
    for f in x1_ops(0, vc, CVX): f()
    if o("x2t", False):
        a("buffer_load_dword v254, v9, s[16:19], 0 offen"); vc.issue("T")
    a("v_and_b32 v10, 15, v0"); a("v_lshrrev_b32 v11, 4, v0")
    a("v_lshrrev_b32 v12, 1, v10"); a("v_xor_b32 v12, v12, v11")
    a(f"v_lshlrev_b32 v{AC0}, 7, v10"); a(f"v_lshl_add_u32 v{AC0}, v12, 4, v{AC0}")
    a(f"v_add_u32 v{AC0}, {slot1(0)}, v{AC0}"); a(f"v_xor_b32 v{AC1}, 64, v{AC0}")
    a("v_and_b32 v12, 2, v10"); a("v_lshlrev_b32 v12, 2, v12")
    a("v_lshrrev_b32 v13, 2, v10"); a("v_lshl_add_u32 v12, v13, 1, v12")
    a("v_and_b32 v13, 1, v10"); a("v_add_u32 v12, v12, v13")
    a("v_lshl_add_u32 v12, v11, 4, v12")
    a("s_lshl_b32 s50, s3, 12")
    a(f"v_lshlrev_b32 v{B0}, 4, v12"); a(f"v_add_u32 v{B0}, s50, v{B0}"); a(f"v_xor_b32 v{B1}, 16, v{B0}")
    a("s_lshl_b32 s50, s3, 2"); a("v_add_u32 v12, s50, v11")
    a("v_and_b32 v13, 7, v10"); a("v_xor_b32 v12, v12, v13")
    a(f"v_lshlrev_b32 v{VO}, 8, v10"); a(f"v_lshl_add_u32 v{VO}, v12, 4, v{VO}")
    a("v_mul_u32_u24 v1, 9216, v10"); a("v_lshl_add_u32 v1, v11, 4, v1")
    a("s_lshl_b32 s50, s3, 6"); a("v_add_u32 v1, s50, v1")
    X1P = o("x1p", "mid")
    if X1P == "pro":
        for f in x1_ops(1, vc, CVX): f()
    srd(36, 14, "s48", O_BYTES)
    lc = Cnt(a, "lgkmcnt", 15)
    wreg = lambda ks, c: WP + 8*ks + 4*c
    def mfma1(acc, ks, c, fr, first):
        src = "0" if first else f"v[{acc+4*c}:{acc+4*c+3}]"
        a(f"v_mfma_f32_16x16x32_bf16 v[{acc+4*c}:{acc+4*c+3}], v[{wreg(ks,c)}:{wreg(ks,c)+3}], v[{fr}:{fr+3}], {src}")
    cvt1 = lambda dst, acc, m: a(f"v_cvt_pk_bf16_f32 v{dst+m}, v{acc+2*m}, v{acc+2*m+1}")
    if o("zero", True):
        a("v_mov_b32 v8, 0"); a("v_mov_b32 v9, 0"); a("v_mov_b32 v10, 0"); a("v_mov_b32 v11, 0")
        a(f"s_mul_i32 s50, s3, {S1}"); a(f"s_cmp_eq_u32 s3, 3"); a(f"s_cselect_b32 s50, 0, s50"); a(f"s_add_u32 s50, s50, {X1 + F*2048 + 1024}")
        a("v_lshlrev_b32 v12, 4, v0"); a("v_add_u32 v12, s50, v12")
        a("ds_write_b128 v12, v[8:11]"); a("s_waitcnt lgkmcnt(0)")
    a("s_mov_b32 s90, 0x00ff00ff"); a("s_mov_b32 s91, 0x00ff00ff")
    def epi_wr(src, off, half=False, areg=VO):
        if half: a("s_and_saveexec_b64 s[96:97], s[90:91]")
        a(f"ds_write_b128 v{areg}, v[{src}:{src+3}] offset:{off}"); lc.issue("ow")
        if half: a("s_mov_b64 exec, s[96:97]")
    cvt_ops = lambda dst, acc: [lambda m=m: cvt1(dst, acc, m) for m in range(4)]
    def epi_ops(acc, slot, half=False):
        return cvt_ops(acc, acc) + [lambda: epi_wr(acc, slot*4096, half)]
    if PADS:
        for w_ in range(min(4, len(PADS))):
            a(f"s_cmp_eq_u32 s3, {w_}"); a(f"s_cbranch_scc1 L_pad{w_}")
        a.label("L_warm_ret")
    DRY = o("dry", None)
    if DRY is not None:
        a("s_mov_b64 exec, 0"); a("s_branch L_dry")
        a.label("L_dry_ret")
        a("s_mov_b64 exec, -1")
    def cbar(name):
        if DRY is not None:
            lab[0] += 1
            a(f"s_cbranch_execz L_nb{lab[0]}"); a("s_barrier"); a.label(f"L_nb{lab[0]}")
        else: a("s_barrier")
    vc.wait(["T", ("X", 0)])
    if X1P == "mid":
        for f in x1_ops(1, vc, CVX): f()
    H1 = 3
    EXT = [wreg(16, 0), wreg(16, 1), wreg(17, 0), wreg(17, 1)]
    tiles = p1_order
    nj = 2*len(tiles)
    def bufs(kb):
        if kb < 7: seq = [(FR1 + EXT)[(kb*nj + j) % 8] for j in range(nj)]
        elif kb == 7:
            seq = [(FR1 + EXT)[(kb*nj + j) % 8] if j < nj - 8 else None for j in range(nj)]
            prev = seq[nj-16:nj-8]
            seq[nj-8:] = [r for r in prev if r in EXT] + [r for r in prev if r in FR1]
        else:
            last = bufs(7)[-4:]
            seq = [last[j % 4] for j in range(nj)]
        return seq
    held = []; free_at = {}; done = [-1]
    pq = (p_ops(0, vc, CVX) if PBY != "L" else []) + (half_ops(1, 0, vc, CVX) if PBY == "C" else [])
    PST = o("pst", {4: 2, 5: 3, 6: 4, 7: 5}) if PBY == "C" else ({7: 9} if PBY == "M" else {})
    for kb in range(9):
        stamp(CS, f"a{kb}")
        pad(f"C{kb}")
        a("s_barrier")
        if kb == DRY: a.label("L_dry")
        stamp(CS, f"b{kb}")
        xo = x1_ops(kb+2, vc, CVX) if kb <= 6 else []
        if kb == 0 and X1P == "late":
            for f in x1_ops(1, vc, CVX): f()
        po = [pq.pop(0) for _ in range(PST.get(kb, 0))]
        jobs = [(t, s) for t in tiles for s in range(2)]
        bf = bufs(kb)
        nxt = [0]
        def rd():
            j = nxt[0]
            if j >= nj: return False
            fr = bf[j]
            if free_at.get(fr, -1) > done[0]: return False
            if j - (done[0] + 1 - kb*nj) >= 6: return False
            t, s = jobs[j]
            a(f"ds_read_b128 v[{fr}:{fr+3}], v{AC1 if s else AC0} offset:{t*2048}"); lc.issue(("a", kb, j))
            free_at[fr] = kb*nj + j; nxt[0] += 1
            return True
        wq = [(s, c) for s in range(2) for c in range(2)]
        def wrd():
            s, c = wq.pop(0); r = wreg(2*kb+s, c)
            a(f"ds_read_b128 v[{r}:{r+3}], v{B1 if c else B0} offset:{(kb&1)*16384 + s*2048 + c*1024}"); lc.issue(("w", kb, s))
        wrd(); wrd(); rd()
        for (job, fr, gj) in held:
            job(fr, 0)
            if wq: wrd()
            else: rd()
            job(fr, 1); done[0] = gj
            if wq: wrd()
            else: rd()
        while wq: wrd()
        while rd(): pass
        if o("xpos", "fast") == "start":
            while xo: xo.pop(0)()
        fillq = []
        for j in range(nj - H1):
            t, s = jobs[j]
            if j % 2 == 0 or kb == 8: lc.wait([("a", kb, min(j + (1 if kb < 8 else 0), nxt[0]-1)), ("w", kb, 1 if kb < 8 else s)])
            sk = o("nomf") and kb < 8
            if not sk: mfma1(ACC + 8*t, 2*kb+s, 0, bf[j], kb == 0 and s == 0)
            rd()
            if not sk: mfma1(ACC + 8*t, 2*kb+s, 1, bf[j], kb == 0 and s == 0)
            done[0] = kb*nj + j
            if nxt[0] - j - 1 < 5 and kb != 8: rd()
            if j % o("xsp", 2) == 1:
                if xo: xo.pop(0)()
                elif po: po.pop(0)()
            if kb == 8:
                if j >= 5 and j % 2 == 1 and wstage[jobs[j-4][0]] == 8:
                    tt = jobs[j-4][0]
                    fillq += epi_ops(ACC + 8*tt, p1_out[tt], half=(tt == F))
                for _ in range(o("e8", 2)):
                    if fillq: fillq.pop(0)()
        while rd(): pass
        assert nxt[0] == nj, (kb, nxt[0])
        while fillq: fillq.pop(0)()
        while xo: xo.pop(0)()
        while po: po.pop(0)()
        nb = slot1(kb+1) if kb < 8 else pslot(0)
        d = nb - slot1(kb)
        lc.wait_all()
        op = "v_add_u32" if d >= 0 else "v_subrev_u32"
        a(f"{op} v{AC0}, {abs(d)}, v{AC0}"); a(f"{op} v{AC1}, {abs(d)}, v{AC1}")
        if kb < 8: vc.wait(("X", kb+1))
        elif DRY == 8:
            lab[0] += 1
            a(f"s_cbranch_execz L_nb{lab[0]}"); vc.wait([("P", 0), ("P", 1)]); a.label(f"L_nb{lab[0]}")
        else: vc.wait([("P", 0), ("P", 1)])
        held = [((lambda fr, c, t=jobs[j][0], s=jobs[j][1], kb=kb: mfma1(ACC + 8*t, 2*kb+s, c, fr, kb == 0 and s == 0)), bf[j], kb*nj + j) for j in range(nj-H1, nj)]
    assert not pq
    held = [(job, fr) for (job, fr, gj) in held]
    XACC, YACC = ACC, ACC + 8
    PK = ACC + 36
    NB = 9; HOLD = 3; WE = o("we", 3)
    heldregs = [fr for (_, fr) in held]
    ring = [r for r in FR1 if r not in heldregs] + [ACC+16, ACC+20, ACC+24, ACC+28, ACC+32] + heldregs
    def pair_body(pi):
        nonlocal held
        jobs = [(b, ks) for b in range(2) for ks in range(18)]
        def rd(j):
            b, ks = jobs[j]; fr = ring[j % NB]
            a(f"ds_read_b128 v[{fr}:{fr+3}], v{AC1 if ks & 1 else AC0} offset:{b*18432 + (ks>>1)*2048}"); lc.issue(("p", j))
        pre = NB - HOLD
        hm_ = [(job, fr, c) for (job, fr) in held for c in range(2)]
        rd(0); rd(1); nxt = 2
        for (job, fr, c) in hm_:
            job(fr, c)
            if nxt < pre: rd(nxt); nxt += 1
        fillq = []
        for j in range(36 - HOLD):
            b, ks = jobs[j]
            if j % WE == 0: lc.wait(("p", min(j + WE - 1, 35)))
            acc = YACC if b else XACC
            mfma1(acc, ks, 0, ring[j % NB], ks == 0)
            if nxt < 36 and nxt - NB < j: rd(nxt); nxt += 1
            mfma1(acc, ks, 1, ring[j % NB], ks == 0)
            if o("deep", True) and nxt < 36 and nxt - NB <= j and nxt - j - 1 < NB - 1 and not fillq: rd(nxt); nxt += 1
            if j == 1:
                if pi > 0: fillq += cvt_ops(YACC, YACC) + [lambda: epi_wr(YACC, 0, areg=B0)]
                else:
                    for tt in p1_order:
                        if wstage[tt] == 9: fillq += epi_ops(ACC + 8*tt, p1_out[tt], half=(tt == F))
            if j == 22: fillq += cvt_ops(XACC, XACC) + [(lambda: epi_wr(XACC, 4096, areg=B0)) if pi > 0 else (lambda: epi_wr(XACC, 11*4096))]
            if o("noepi"): fillq = []
            if fillq:
                fillq.pop(0)()
                if len(fillq) > 32 - j: fillq.pop(0)()
        assert not fillq and nxt == 36, (len(fillq), nxt)
        lc.wait_all()
        held = [((lambda fr, c, ks=jobs[j][1]: mfma1(YACC, ks, c, fr, False)), ring[j % NB]) for j in range(36-HOLD, 36)]
    stamp(CS, "a9")
    pad("C9")
    if DRY == 9:
        a("s_barrier"); a.label("L_dry")
    else: cbar(9)
    stamp(CS, "b9")
    pair_body(0)
    stamp(CS, "a10")
    pad("C10")
    a(f"s_mov_b32 s40, {(-2*PSTR) & 0xffffffff}")
    a(f"v_add_u32 v{B0}, {6*4096}, v{VO}")
    a("s_mov_b32 s42, 1")
    for it in range(3 if o("unroll") else 1):
        if not o("unroll"): a.label("L_p2")
        a(f"v_add_u32 v{AC0}, s40, v{AC0}"); a(f"v_add_u32 v{AC1}, s40, v{AC1}")
        a(f"s_mov_b32 s40, {PSTR}")
        a(f"v_xor_b32 v{B0}, 8192, v{B0}")
        cbar(10)
        if o("unroll"): stamp(CS, f"b{10+it}")
        lc.ops = []
        pair_body(1)
        if o("unroll"): pad(f"C{11+it}")
    if not o("unroll"):
        if DRY is not None: a("s_cbranch_execz L_dry_ret")
        a("s_add_u32 s42, s42, 1"); a(f"s_cmp_lt_u32 s42, {NP}"); a("s_cbranch_scc1 L_p2")
    stamp(CS, "a13")
    a("s_barrier")
    stamp(CS, "b13")
    for (job, fr) in held:
        job(fr, 0); job(fr, 1)
    a(f"s_mov_b32 s52, {prow(NP-1, 1)*9216}")
    a("s_nop 6")
    for m in range(4): cvt1(YACC, YACC, m)
    a(f"buffer_store_dwordx4 v[{YACC}:{YACC+3}], v1, s[36:39], s52 offen {o('lastflag', STFLAG)}")
    if STAMP:
        a("s_waitcnt vmcnt(0)")
        a.label("L_stamp")
        a("s_memrealtime s[58:59]"); a(f"{MT} s[98:99]")
        a("s_getreg_b32 s96, hwreg(HW_REG_XCC_ID)"); a("s_getreg_b32 s97, hwreg(HW_REG_HW_ID)")
        a("s_waitcnt lgkmcnt(0)")
        a("s_mov_b32 s92, s98")
        if o("spin"):
            K_, wg_ = o("spin")
            a(f"s_cmp_lg_u32 s2, {wg_}"); a("s_cbranch_scc1 L_end")
            a("s_cmp_lg_u32 s3, 1"); a("s_cbranch_scc1 L_end")
            src = "s64" if CS else "s92"
            if K_ > 1000: a(f"s_mov_b32 s98, {K_}")
            else:
                a(f"s_sub_u32 s98, {src}, s62"); a(f"s_mul_i32 s98, s98, {K_}"); a("s_min_u32 s98, s98, 20000")
            a.label("L_spin")
            a("s_memrealtime s[58:59]"); a("s_waitcnt lgkmcnt(0)")
            a("s_sub_u32 s99, s58, s62"); a("s_cmp_lt_u32 s99, s98"); a("s_cbranch_scc1 L_spin")
            a("s_endpgm")
        a("s_mov_b32 s84, s56"); a("s_and_b32 s85, s57, 0xffff"); a("s_mov_b32 s86, 0x100000"); a("s_mov_b32 s87, 0x20000")
        a("s_lshl_b32 s98, s2, 3"); a("s_add_u32 s98, s98, s3"); a("s_lshl_b32 s98, s98, 6")
        vals = ["s60", "s58", "s62", "s92"] + [f"s{64+2*i}" for i in range(8)] + ["0", "0x5a5a1234", "s97", "s96"]
        a("v_mov_b32 v1, 0")
        for i, v in enumerate(vals):
            a(f"v_mov_b32 v2, {v}"); a(f"v_cmp_eq_u32 vcc, {i}, v0"); a("s_nop 1"); a("v_cndmask_b32 v1, v1, v2, vcc")
        a("v_lshlrev_b32 v2, 2, v0"); a("v_cmp_gt_u32 vcc, 16, v0"); a("s_and_saveexec_b64 s[100:101], vcc")
        a("buffer_store_dword v1, v2, s[84:87], s98 offen"); a("s_waitcnt vmcnt(0)")
    a.label("L_end")
    a(f".set CPL, (L_end-{NAME}_kernel+8191)/8192")
    open(out, "w").write(wrap(a.text(), (256,1,1), 512, LDS, 256, 102, 256, pre_align=".p2align 12\n"))

def st(*keys): return {k: i for i, k in enumerate(keys)}
if __name__ == "__main__":
    F3 = dict(stamp=True, rt=True, cs=st("b0", "b4", "b8", "b9", "b10", "b11", "b12", "b13"), ls=st("s", "w5", "c5", "b5", "a10", "a11", "a12", "a13"))
    B = dict(wr="spread", xsp=3)
    gen("v15.s", B)
    PD = ["L3", "C4", "C9"]
    F4 = dict(B, stamp=True, unroll=True, cs=st("b8", "a9", "b9", "a10", "b10", "b11", "b12", "a13"), ls=st("a8", "a9", "a10", "a11", "a12", "a13"))
    gen("v15a.s", dict(F4))
    gen("v15b.s", dict(F4, pads=PD + ["C12"]))
    F5 = dict(B, stamp=True, rt=True, cs=st("b0", "b2", "b4", "b8", "b9", "a10", "a13"), ls=st("a8", "a9", "a10", "a11", "a12", "a13"))
    gen("v15d.s", dict(F5))
    gen("v15e.s", dict(F5, pads=PD))
    gen("v15f.s", dict(F5, pads=PD, ct=[]))
    gen("v15g.s", dict(F5, pads=PD, unroll=True))
    gen("h15a.s", dict(B))
    gen("h15b.s", dict(B, pads=PD))
    S = dict(B, stamp=True, rt=True)
    gen("sp_a.s", dict(S, spin=(5000, 133)))
    gen("sp_b.s", dict(S, cs=st("b0"), spin=(20, 133)))
    gen("sp_c.s", dict(S, cs=st("b2"), spin=(12, 133)))
    gen("sp_d.s", dict(S, cs=st("b8"), spin=(6, 133)))
    gen("sp_e.s", dict(S, cs=st("a13"), spin=(4, 133)))
    gen("sp_f.s", dict(S, spin=(4, 133)))
```

```python
import sys
from common import *
from gen_v1 import Cnt

def gen(out, opts):
    o = lambda k, d=None: opts.get(k, d)
    STAMP = o("stamp", False); STFLAG = o("stflag", "sc1")
    MT = "s_memrealtime" if o("rt") else "s_memtime"
    WRM = o("wr", "end"); PRE = o("pre", 4)
    LS = o("ls", {}); CS = o("cs", {})
    a = Asm()
    F = 10; NP = 4
    X1 = 12*4096; S1 = 22528; PSTR = 38912
    slot1 = lambda u: X1 + (u % 3)*S1
    pslot = lambda m: X1 + ((m+2) % 3)*PSTR
    LDS = 163840
    ATAB = 8*4096
    p1_order = [0, 1, 2, 3, 4, F, 5, 6, 7, 8, 9]
    E8 = o("e8n", 3)
    wstage = {t: (8 if n < E8 else 9) for n, t in enumerate(p1_order)}
    p1_out = {}
    f8 = [4, 5, 6, 7, 8][:E8]; f9 = [x for x in [0, 1, 2, 3, 9, 10, 8, 7] if x not in f8]
    for t in p1_order: p1_out[t] = (f8 if wstage[t] == 8 else f9).pop(0)
    p2slot = lambda m, b: 11 if (m, b) == (0, 0) else 4 + (2*m + b - 1) % 4
    trow = lambda t: 288 if t == F else 16*t
    prow = lambda m, b: 16*(F + 2*m + b)
    lab = [0]
    PADS = o("pads", [])
    def pad(key):
        if key in PADS:
            k = PADS.index(key)
            nxt_ = f"L_pad{k+4}" if k+4 < len(PADS) else "L_warm_ret"
            a(f"s_branch L_pads{k}"); a.label(f"L_pad{k}"); a(f"s_branch {nxt_}"); a.label(f"L_pads{k}")
    def stamp(tab, key):
        if STAMP and key in tab: a(f"{MT} s[{64+2*tab[key]}:{65+2*tab[key]}]")
    def srd(d, lo, off, size):
        if off is None:
            a(f"s_mov_b32 s{d}, s{lo}"); a(f"s_and_b32 s{d+1}, s{lo+1}, 0xffff"); a(f"s_mov_b32 s{d+2}, {size}")
        else:
            a(f"s_add_u32 s{d}, s{lo}, {off}"); a(f"s_addc_u32 s{d+1}, s{lo+1}, 0"); a(f"s_and_b32 s{d+1}, s{d+1}, 0xffff")
            a(f"s_sub_u32 s{d+2}, {size}, {off}")
        a(f"s_mov_b32 s{d+3}, 0x20000")
    def xdma_setup(dst):
        a("v_lshrrev_b32 v13, 3, v0")
        a("s_and_b32 s50, s3, 1"); a("s_lshl_b32 s55, s50, 10"); a("s_lshl_b32 s50, s50, 2")
        a("v_lshrrev_b32 v14, 1, v13"); a("v_add_u32 v14, s50, v14")
        a("v_and_b32 v15, 7, v0"); a("v_xor_b32 v14, v14, v15")
        a("s_lshl_b32 s50, s3, 3"); a("v_add_u32 v13, s50, v13")
        a(f"v_mul_u32_u24 v{dst}, 1152, v13"); a(f"v_lshl_add_u32 v{dst}, v14, 4, v{dst}")
        a("s_lshl_b32 s53, s3, 10")
        a("s_lshr_b32 s50, s3, 1"); a("s_mul_i32 s50, s50, 18432"); a("s_add_u32 s55, s55, s50")
        a("s_sub_u32 s95, 0, s50")
    def ktable():
        for n in range(1, 9):
            a(f"s_add_u32 s{80+n}, s{79+n}, 128"); a(f"s_cmp_eq_u32 s{80+n}, 1152"); a(f"s_cselect_b32 s{80+n}, 0, s{80+n}")
    def x1_ops(kb, vm, VX):
        def piece(j):
            a(f"s_add_u32 m0, s53, {slot1(kb) + j*4096}")
            a(f"s_add_u32 s52, s{80+kb}, {32*j*1152}")
            a(f"buffer_load_dwordx4 v{VX}, s[16:19], s52 offen lds")
            vm.issue(("X", kb))
        def extra():
            lab[0] += 1
            a("s_cmp_lg_u32 s3, 0"); a(f"s_cbranch_scc1 L_sk{lab[0]}")
            a(f"s_mov_b32 m0, {slot1(kb) + F*2048}")
            a(f"s_add_u32 s52, s{80+kb}, {288*1152}")
            a(f"buffer_load_dwordx4 v{VX}, s[16:19], s52 offen lds")
            a.label(f"L_sk{lab[0]}")
            vm.issue(("X", kb), optional=True)
        return [extra] + [lambda j=j: piece(j) for j in range(F//2)]
    def p_ops(m, vm, VX):
        def piece(kb):
            a(f"s_add_u32 m0, s55, {pslot(m) + kb*2048}")
            a(f"s_add_u32 s52, s{80+kb}, {(16*(F+2*m))*1152}")
            a(f"buffer_load_dwordx4 v{VX}, s[16:19], s52 offen lds")
            vm.issue(("P", m))
        return [lambda kb=kb: piece(kb) for kb in range(9)]
    def half_ops(m, b, cnt, VXr):
        def piece(i):
            if i == 4:
                lab[0] += 1
                a("s_cmp_ge_u32 s3, 2"); a(f"s_cbranch_scc1 L_sk{lab[0]}")
            a("s_cmp_ge_u32 s3, 2")
            a(f"s_cselect_b32 s52, s{80+min(2*i+1, 8)}, s{80+2*i}")
            a(f"s_add_u32 m0, s53, {pslot(m) + b*18432 + i*4096}")
            a("s_add_u32 s52, s52, s95")
            a(f"s_add_u32 s52, s52, {16*(F+2*m+b)*1152}")
            a(f"buffer_load_dwordx4 v{VXr}, s[16:19], s52 offen lds")
            if i == 4: a.label(f"L_sk{lab[0]}")
            cnt.issue(("P", m), optional=(i == 4))
        return [lambda i=i: piece(i) for i in range(5)]
    PBY = o("pby", "M")
    if STAMP:
        a("s_memrealtime s[60:61]"); a(f"{MT} s[62:63]")
    a("s_load_dwordx4 s[4:7], s[0:1], 0")
    a("s_load_dwordx4 s[8:11], s[0:1], 16")
    a("s_load_dwordx4 s[12:15], s[0:1], 32")
    if STAMP: a("s_load_dwordx2 s[56:57], s[0:1], 56")
    a("s_and_b32 s40, s2, 7"); a("s_lshr_b32 s41, s2, 3")
    a("s_mul_i32 s42, s40, 63"); a("s_lshr_b32 s43, s42, 1")
    a("s_add_u32 s42, s42, 63"); a("s_lshr_b32 s42, s42, 1")
    a("s_add_u32 s43, s43, s41")
    a("s_cmp_ge_u32 s43, s42"); a("s_cbranch_scc1 L_end")
    a("s_mul_i32 s44, s43, 9363"); a("s_lshr_b32 s44, s44, 16")
    a("s_mul_i32 s50, s44, 7"); a("s_sub_u32 s45, s43, s50")
    a("v_lshrrev_b32 v1, 6, v0"); a("v_and_b32 v0, 63, v0")
    if o("rot", True):
        a("s_sub_u32 s49, s43, s41")
        a("s_max_u32 s49, s49, s50"); a("s_add_u32 s51, s50, 7"); a("s_min_u32 s51, s51, s42")
        a("s_sub_u32 s51, s51, s49")
        a("s_sub_u32 s89, s43, s49"); a("s_mul_i32 s89, s89, 9")
        a("s_movk_i32 s52, 16384"); a("s_cmp_eq_u32 s51, 7"); a("s_cselect_b32 s52, 9363, s52"); a("s_cmp_eq_u32 s51, 3"); a("s_cselect_b32 s52, 21846, s52")
        a("s_mul_i32 s89, s89, s52"); a("s_lshr_b32 s89, s89, 16")
        a(f"s_mul_i32 s52, s40, {o('xm', 1)}"); a("s_add_u32 s89, s89, s52")
        a("s_mul_i32 s49, s89, 7282"); a("s_lshr_b32 s49, s49, 16"); a("s_mul_i32 s49, s49, 9"); a("s_sub_u32 s89, s89, s49")
    else:
        a("s_mov_b32 s89, 0")
    a("v_readfirstlane_b32 s3, v1")
    a("s_lshl_b32 s80, s89, 7")
    a("s_mul_i32 s46, s45, %d" % (292*1152))
    a("s_lshl_b32 s47, s44, 9")
    a("s_mul_i32 s48, s45, %d" % (292*9216)); a("s_lshl_b32 s49, s44, 8"); a("s_add_u32 s48, s48, s49")
    a("s_cmp_ge_u32 s3, 4"); a("s_cbranch_scc0 L_compute")

    a("s_sub_u32 s3, s3, 4")
    if o("lprio"): a(f"s_setprio {o('lprio')}")
    VX, VA, VS, VWR0, VWR1, VOR, VOS, VAR = 3, 4, 5, 6, 7, 8, 9, 21
    RAW = [32, 64, 96]; AF = [128, 136]; SC = 144; NZ = 148; WO = 152; VWI = 168; STB, STN = 176, 20
    a("v_and_b32 v10, 31, v0"); a("v_lshrrev_b32 v11, 5, v0")
    a("s_lshl_b32 s50, s3, 1"); a("v_add_u32 v12, s50, v11")
    a("s_mov_b32 s51, %d" % (8*18432))
    a(f"v_mul_lo_u32 v{VWI}, v12, s51"); a(f"v_lshl_add_u32 v{VWI}, v10, 4, v{VWI}")
    for i in range(1, 8): a(f"v_add_u32 v{VWI+i}, {i*18432}, v{VWI}")
    a(f"v_lshlrev_b32 v{VS}, 3, v10"); a(f"v_add_u32 v{VS}, s49, v{VS}")
    a("v_lshrrev_b32 v13, 1, v0"); a("v_and_b32 v14, 1, v0")
    a("v_add_u32 v13, s89, v13"); a("v_subrev_u32 v15, 9, v13"); a("v_min_u32 v13, v13, v15")
    a(f"v_lshlrev_b32 v{VA}, 7, v13"); a(f"v_lshl_add_u32 v{VA}, v14, 4, v{VA}")
    a("s_lshl_b32 s50, s3, 5"); a(f"v_add_u32 v{VA}, s50, v{VA}")
    a("s_waitcnt lgkmcnt(0)")
    vm = Cnt(a, "vmcnt", 63); lg = Cnt(a, "lgkmcnt", 15)
    cur = [None]
    def w_load(kb, i):
        r = RAW[kb % 3] + 4*i
        if cur[0] != kb:
            a(f"s_mul_i32 s54, s{80+kb}, 9216"); cur[0] = kb
        a(f"buffer_load_dwordx4 v[{r}:{r+3}], v{VWI+i}, s[20:23], s54 offen {o('wflag', '')}")
        vm.issue(("W", kb))
    w_ops = lambda kb: [lambda i=i: w_load(kb, i) for i in range(8)]
    def consts():
        srd(24, 8, None, S_BYTES); srd(28, 10, None, S_BYTES); srd(32, 12, None, A_BYTES)
        a(f"buffer_load_dwordx2 v[16:17], v{VS}, s[24:27], 0 offen"); vm.issue("C")
        a(f"buffer_load_dwordx2 v[18:19], v{VS}, s[28:31], 0 offen"); vm.issue("C")
        a(f"buffer_load_dwordx4 v[24:27], v{VA}, s[32:35], 0 offen"); vm.issue("C")
    srd(20, 6, "s47", W_BYTES)
    if o("cfirst", True):
        w_ops(0)[0](); consts()
        for f in w_ops(0)[1:]: f()
    else:
        for f in w_ops(0): f()
        consts()
    ktable()
    for f in w_ops(1)[:PRE]: f()
    a("s_setreg_imm32_b32 hwreg(HW_REG_MODE, 4, 2), 3")
    srd(16, 4, "s46", X_BYTES)
    srd(36, 14, "s48", O_BYTES)
    xdma_setup(VX)
    a("v_lshrrev_b32 v13, 3, v10"); a("v_lshlrev_b32 v13, 12, v13")
    a("v_and_b32 v14, 1, v10"); a("v_lshl_add_u32 v13, v14, 10, v13")
    a("v_and_b32 v15, 6, v10"); a("v_add_u32 v15, v15, v14")
    a("s_and_b32 s50, s3, 1"); a("s_lshl_b32 s50, s50, 1"); a("v_add_u32 v20, s50, v11")
    a("v_lshl_add_u32 v15, v20, 4, v15"); a("v_lshl_add_u32 v13, v15, 4, v13")
    a("s_lshr_b32 s50, s3, 1"); a("s_lshl_b32 s50, s50, 11")
    a(f"v_add_u32 v{VWR0}, s50, v13"); a(f"v_xor_b32 v{VWR1}, 16, v{VWR0}")
    a("v_lshrrev_b32 v13, 4, v0"); a("s_lshl_b32 s50, s3, 2"); a("v_add_u32 v13, s50, v13")
    a("v_and_b32 v14, 15, v0"); a("v_and_b32 v15, 7, v13"); a("v_xor_b32 v15, v15, v14")
    a(f"v_lshlrev_b32 v{VOR}, 8, v13"); a(f"v_lshl_add_u32 v{VOR}, v15, 4, v{VOR}")
    a(f"v_mul_u32_u24 v{VOS}, 9216, v13"); a(f"v_lshl_add_u32 v{VOS}, v14, 4, v{VOS}")
    a(f"s_add_u32 s50, s53, {ATAB}")
    a("v_min_u32 v22, 31, v0"); a("v_lshlrev_b32 v22, 5, v22"); a("v_add_u32 v22, s50, v22")
    a(f"v_lshlrev_b32 v{VAR}, 5, v11"); a(f"v_add_u32 v{VAR}, s50, v{VAR}")
    VCP = 30
    a("s_getpc_b64 s[90:91]")
    a.label("L_pc")
    a(f"s_sub_u32 s90, s90, L_pc-{NAME}_kernel"); a("s_subb_u32 s91, s91, 0")
    a("s_lshl_b32 s52, s41, 2"); a("s_add_u32 s52, s52, s3"); a("s_mul_i32 s52, s52, CPL*64")
    a(f"v_min_u32 v{VCP}, CPL-1, v0"); a(f"v_lshlrev_b32 v{VCP}, 6, v{VCP}"); a(f"v_add_u32 v{VCP}, s52, v{VCP}")
    a(f"v_min_u32 v{VCP}, L_end-{NAME}_kernel, v{VCP}")
    def ctouch():
        a("s_mov_b64 exec, 15")
        a(f"global_load_dword v{VCP+1}, v{VCP}, s[90:91]"); vm.issue("T")
        a("s_mov_b64 exec, -1")
    CT = o("ct", [-1])
    if -1 in CT: ctouch()
    vm.wait("C")
    for i in range(4):
        a(f"v_lshlrev_b32 v{AF[0]+2*i}, 16, v{24+i}"); a(f"v_and_b32 v{AF[0]+2*i+1}, 0xffff0000, v{24+i}")
    a("s_mov_b32 s50, 0x58000000")
    for i in range(8): a(f"v_mul_f32 v{AF[0]+i}, s50, v{AF[0]+i}")
    a(f"ds_write_b128 v22, v[{AF[0]}:{AF[0]+3}]"); a(f"ds_write_b128 v22, v[{AF[0]+4}:{AF[0]+7}] offset:16")
    for i in range(2):
        a(f"v_lshlrev_b32 v{SC+2*i}, 16, v{16+i}"); a(f"v_and_b32 v{SC+2*i+1}, 0xffff0000, v{16+i}")
        a(f"v_lshlrev_b32 v{NZ+2*i}, 16, v{18+i}"); a(f"v_and_b32 v{NZ+2*i+1}, 0xffff0000, v{18+i}")
    a("s_mov_b32 s50, 0xa7000000")
    a("s_mov_b32 s51, 0x71800000")
    for e in range(4):
        a(f"v_mul_f32 v{NZ+e}, v{NZ+e}, v{SC+e}"); a(f"v_mul_f32 v{NZ+e}, s50, v{NZ+e}"); a(f"v_mul_f32 v{SC+e}, s51, v{SC+e}")
    a("s_waitcnt lgkmcnt(0)")
    def a_read(kb):
        r = AF[kb & 1]
        a(f"ds_read_b128 v[{r}:{r+3}], v{VAR} offset:{kb*64}"); a(f"ds_read_b128 v[{r+4}:{r+7}], v{VAR} offset:{kb*64+16}")
        lg.issue(("a", kb)); lg.issue(("a", kb))
    a_read(0)
    def convert(kb, fillers, prebar=None):
        R = RAW[kb % 3]; A = AF[kb & 1]
        steps = []
        def wr(e):
            a(f"ds_write_b128 v{VWR1 if e & 1 else VWR0}, v[{WO+4*e}:{WO+4*e+3}] offset:{(kb&1)*16384 + (e>>1)*128}"); lg.issue("w")
        for e in range(4):
            for hf in range(2):
                def st(e=e, hf=hf):
                    if not o("noconv"):
                        if o("al", True): a(".p2align 3")
                        for i in range(4*hf, 4*hf+4): a(f"v_fma_f32 v{R+4*i+e}, v{R+4*i+e}, v{SC+e}, v{NZ+e}")
                        for i in range(4*hf, 4*hf+4): a(f"v_mul_f32 v{R+4*i+e}, v{R+4*i+e}, v{A+i}")
                        for m in (2*hf, 2*hf+1): a(f"v_cvt_pk_bf16_f32 v{WO+4*e+m}, v{R+8*m+e}, v{R+8*m+4+e}")
                    if e == 0 and hf == 1 and prebar is not None: prebar()
                    if hf == 1 and (WRM == "spread" or kb in (0, 8)): wr(e)
                steps.append(st)
        vm.wait(("W", kb))
        stamp(LS, f"w{kb}")
        lg.wait(("a", kb))
        if kb < 8 and prebar is None: a_read(kb+1)
        nf, ns = len(fillers), len(steps); fi = 0
        for si, s in enumerate(steps):
            s()
            stamp(LS, f"s{kb}_{si}")
            while fi < min(nf, (si+1)*nf//ns + (1 if nf else 0)):
                fillers[fi](); fi += 1
        while fi < nf:
            fillers[fi](); fi += 1
        stamp(LS, f"f{kb}")
        if not (WRM == "spread" or kb in (0, 8)):
            for e in range(4): wr(e)
    stq = []; stn = [0]
    def fetch_tiles(lst):
        for (slot, row0, half) in lst:
            r = STB + 4*(stn[0] % STN); stn[0] += 1
            a(f"ds_read_b128 v[{r}:{r+3}], v{VOR} offset:{slot*4096}"); lg.issue(("o", r))
            stq.append((r, row0, half))
    def do_stores(n):
        for _ in range(min(n, len(stq))):
            r, row0, half = stq.pop(0)
            lg.wait(("o", r))
            if o("nost"): continue
            if half:
                lab[0] += 1
                a("s_cmp_eq_u32 s45, 6"); a("s_cselect_b32 s50, 2, 1"); a("s_cmp_ge_u32 s3, s50"); a(f"s_cbranch_scc1 L_sk{lab[0]}")
            a(f"s_mov_b32 s52, {row0*9216}")
            a(f"buffer_store_dwordx4 v[{r}:{r+3}], v{VOS}, s[36:39], s52 offen {STFLAG if n != 99 else o('lastflag', STFLAG)}")
            if half: a.label(f"L_sk{lab[0]}")
            vm.issue("S", optional=half)
    def bar(n):
        stamp(LS, f"a{n}")
        if lg.ops: lg.wait_all()
        a("s_barrier")
        stamp(LS, f"b{n}")
    stamp(LS, "s")
    for n in range(9):
        fill = w_ops(n+2) if n < 7 else []
        if n == 0: fill = w_ops(1)[PRE:] + fill
        SU = o("su", 1)
        if SU == 1:
            if n == 0: fill = w_ops(1)[PRE:]
            if n == 1: fill = w_ops(2) + w_ops(3)[:4]
            if n == 2: fill = w_ops(3)[4:] + w_ops(4)
        elif SU == 2:
            if n == 0: fill = w_ops(1)[PRE:] + w_ops(2)[:4]
            if n == 1: fill = w_ops(2)[4:] + w_ops(3)[:4]
            if n == 2: fill = w_ops(3)[4:] + w_ops(4)[:6]
            if n == 3: fill = w_ops(4)[6:] + w_ops(5)
        elif SU == 3:
            if n == 0: fill = w_ops(1)[PRE:]
            if n == 1: fill = w_ops(2)
            if n == 2: fill = w_ops(3) + w_ops(4)[:3]
            if n == 3: fill = w_ops(4)[3:] + w_ops(5)[:6]
            if n == 4: fill = w_ops(5)[6:] + w_ops(6)
        if PBY == "L" and n == 7: fill = p_ops(0, vm, VX)
        if PBY in ("L", "M") and n == 8: fill = [lambda: None, lambda: None] + half_ops(1, 0, vm, VX)
        if n in CT: fill = fill + [ctouch]
        RA = o("ra", 2)
        if RA and n >= RA:
            def pb(n=n):
                bar(n-1)
                if n < 8: a_read(n+1)
            convert(n, fill, prebar=pb)
        else:
            convert(n, fill)
        stamp(LS, f"c{n}")
        pad(f"L{n}")
        if not RA or n < RA-1 or n == 8: bar(n)
    if o("lprio"): a("s_setprio 0")
    for f in half_ops(1, 1, vm, VX): f()
    preg = lambda m: 32 + 36*(m-2)
    def preg_ops(m):
        def piece(kb):
            a(f"s_add_u32 s52, s{80+kb}, {(16*(F+2*m))*1152}")
            r = preg(m) + 4*kb
            a(f"buffer_load_dwordx4 v[{r}:{r+3}], v{VX}, s[16:19], s52 offen")
            vm.issue(("P", m))
        return [lambda kb=kb: piece(kb) for kb in range(9)]
    VXW = 28
    a(f"v_lshlrev_b32 v{VXW}, 4, v0"); a(f"v_add_u32 v{VXW}, s55, v{VXW}")
    a(f"v_add_u32 v{VXW+1}, {pslot(3)}, v{VXW}"); a(f"v_add_u32 v{VXW}, {pslot(2)}, v{VXW}")
    def pw_ops(m):
        def w(kb):
            vm.wait(("P", m))
            if o("nopw"): return
            r = preg(m) + 4*kb
            if o("pw64"):
                a(f"ds_write_b64 v{VXW + m - 2}, v[{r}:{r+1}] offset:{kb*2048}"); lg.issue("px")
                a(f"ds_write_b64 v{VXW + m - 2}, v[{r+2}:{r+3}] offset:{kb*2048+8}"); lg.issue("px")
            else:
                a(f"ds_write_b128 v{VXW + m - 2}, v[{r}:{r+3}] offset:{kb*2048}"); lg.issue("px")
            if o("pwpace"): lg.wait_all()
        return [lambda kb=kb: w(kb) for kb in range(9)]
    def mix(l1, l2):
        r = []; i = j = 0
        while i < len(l1) or j < len(l2):
            if j >= len(l2) or (i < len(l1) and i*len(l2) <= j*len(l1)): r.append(l1[i]); i += 1
            else: r.append(l2[j]); j += 1
        return r
    STB = 104; STN = 36
    P3B = o("p3b", False)
    pl = preg_ops(2) + preg_ops(3); NPRE = o("p2pre", 9)
    for f in pl[:NPRE]: f()
    vm.wait(("P", 0))
    bar(9)
    SP = o("sp", [3, 6, 5, 2])
    p1t = lambda st_: [(p1_out[t], trow(t), t == F) for t in p1_order if wstage[t] == st_]
    p2t = lambda m: [(p2slot(m, b), prow(m, b), False) for b in range(2)]
    st_ops = lambda n: [lambda: do_stores(1) for _ in range(n)]
    fetch_tiles(p1t(8))
    for f in pl[NPRE:]: f()
    vm.wait(("P", 1))
    pw2 = pw_ops(2); N9 = o("pw9", 0)
    for f in mix(st_ops(SP[0]), pw2[:N9]): f()
    bar(10)
    pt = lambda m, b: (p2slot(m, b), prow(m, b), False)
    fetch_tiles(p1t(9) + [pt(0, 0)])
    for f in mix(st_ops(SP[1]), pw2[N9:]): f()
    bar(11)
    fetch_tiles([pt(0, 1), pt(1, 0)])
    for f in mix(st_ops(SP[2]), pw_ops(3)): f()
    bar(12)
    fetch_tiles([pt(1, 1), pt(2, 0)]); do_stores(SP[3])
    bar(13)
    fetch_tiles([pt(2, 1), pt(3, 0)]); do_stores(99)
    if STAMP:
        a("s_waitcnt vmcnt(0)"); a("s_add_u32 s3, s3, 4"); a("s_branch L_stamp")
    else:
        a("s_endpgm")

    a.label("L_compute")
    WP = 112; ACC = 24; FR1 = [8, 12, 16, 20]
    AC0, AC1, B0, B1, VO, CVX = 2, 3, 4, 5, 6, 7
    vc = Cnt(a, "vmcnt", 63)
    xdma_setup(CVX)
    ktable()
    if o("x2t", False):
        a("s_lshl_b32 s50, s44, 5"); a("s_lshl_b32 s51, s3, 3"); a("s_add_u32 s50, s50, s51"); a("v_add_u32 v8, s50, v0")
        a("v_mul_u32_u24 v9, 7282, v8"); a("v_lshrrev_b32 v9, 16, v9"); a("v_mul_u32_u24 v10, 9, v9"); a("v_sub_u32 v10, v8, v10")
        a("v_add_u32 v9, 160, v9"); a("v_mul_u32_u24 v9, 1152, v9"); a("v_lshl_add_u32 v9, v10, 7, v9")
        a("v_cmp_gt_u32 vcc, 8, v0"); a("v_mov_b32 v10, 0x7fffffff"); a("s_nop 0"); a("v_cndmask_b32 v9, v10, v9, vcc")
    a("s_waitcnt lgkmcnt(0)")
    srd(16, 4, "s46", X_BYTES)
    for f in x1_ops(0, vc, CVX): f()
    if o("x2t", False):
        a("buffer_load_dword v254, v9, s[16:19], 0 offen"); vc.issue("T")
    a("v_and_b32 v10, 15, v0"); a("v_lshrrev_b32 v11, 4, v0")
    a("v_lshrrev_b32 v12, 1, v10"); a("v_xor_b32 v12, v12, v11")
    a(f"v_lshlrev_b32 v{AC0}, 7, v10"); a(f"v_lshl_add_u32 v{AC0}, v12, 4, v{AC0}")
    a(f"v_add_u32 v{AC0}, {slot1(0)}, v{AC0}"); a(f"v_xor_b32 v{AC1}, 64, v{AC0}")
    a("v_and_b32 v12, 2, v10"); a("v_lshlrev_b32 v12, 2, v12")
    a("v_lshrrev_b32 v13, 2, v10"); a("v_lshl_add_u32 v12, v13, 1, v12")
    a("v_and_b32 v13, 1, v10"); a("v_add_u32 v12, v12, v13")
    a("v_lshl_add_u32 v12, v11, 4, v12")
    a("s_lshl_b32 s50, s3, 12")
    a(f"v_lshlrev_b32 v{B0}, 4, v12"); a(f"v_add_u32 v{B0}, s50, v{B0}"); a(f"v_xor_b32 v{B1}, 16, v{B0}")
    a("s_lshl_b32 s50, s3, 2"); a("v_add_u32 v12, s50, v11")
    a("v_and_b32 v13, 7, v10"); a("v_xor_b32 v12, v12, v13")
    a(f"v_lshlrev_b32 v{VO}, 8, v10"); a(f"v_lshl_add_u32 v{VO}, v12, 4, v{VO}")
    a("v_mul_u32_u24 v1, 9216, v10"); a("v_lshl_add_u32 v1, v11, 4, v1")
    a("s_lshl_b32 s50, s3, 6"); a("v_add_u32 v1, s50, v1")
    X1P = o("x1p", "mid")
    if X1P == "pro":
        for f in x1_ops(1, vc, CVX): f()
    srd(36, 14, "s48", O_BYTES)
    lc = Cnt(a, "lgkmcnt", 15)
    wreg = lambda ks, c: WP + 8*ks + 4*c
    def mfma1(acc, ks, c, fr, first):
        src = "0" if first else f"v[{acc+4*c}:{acc+4*c+3}]"
        a(f"v_mfma_f32_16x16x32_bf16 v[{acc+4*c}:{acc+4*c+3}], v[{wreg(ks,c)}:{wreg(ks,c)+3}], v[{fr}:{fr+3}], {src}")
    cvt1 = lambda dst, acc, m: a(f"v_cvt_pk_bf16_f32 v{dst+m}, v{acc+2*m}, v{acc+2*m+1}")
    if o("zero", True):
        a("v_mov_b32 v8, 0"); a("v_mov_b32 v9, 0"); a("v_mov_b32 v10, 0"); a("v_mov_b32 v11, 0")
        a(f"s_mul_i32 s50, s3, {S1}"); a(f"s_cmp_eq_u32 s3, 3"); a(f"s_cselect_b32 s50, 0, s50"); a(f"s_add_u32 s50, s50, {X1 + F*2048 + 1024}")
        a("v_lshlrev_b32 v12, 4, v0"); a("v_add_u32 v12, s50, v12")
        a("ds_write_b128 v12, v[8:11]"); a("s_waitcnt lgkmcnt(0)")
    a("s_mov_b32 s90, 0x00ff00ff"); a("s_mov_b32 s91, 0x00ff00ff")
    WM = o("wm", "b128")
    if WM == "stag":
        a("s_cmp_lt_u32 s3, 2"); a("s_cselect_b64 s[40:41], -1, 0"); a("s_not_b64 s[46:47], s[40:41]")
    def epi_wr(src, off, half=False, areg=VO, part=0):
        if WM == "stag":
            m = "s[40:41]" if part == 0 else "s[46:47]"
            if half: a(f"s_and_b64 exec, {m}, s[90:91]")
            else: a(f"s_mov_b64 exec, {m}")
            a(f"ds_write_b128 v{areg}, v[{src}:{src+3}] offset:{off}"); lc.issue("ow")
            a("s_mov_b64 exec, -1")
            return
        if half: a("s_mov_b64 exec, s[90:91]")
        if WM == "b64": a(f"ds_write_b64 v{areg}, v[{src+2*part}:{src+2*part+1}] offset:{off+8*part}")
        else: a(f"ds_write_b128 v{areg}, v[{src}:{src+3}] offset:{off}")
        lc.issue("ow")
        if half: a("s_mov_b64 exec, -1")
    cvt_ops = lambda dst, acc: [lambda m=m: cvt1(dst, acc, m) for m in range(4)]
    def tile_ops(acc, off, half=False, areg=VO):
        c = cvt_ops(acc, acc)
        if WM == "b64": return c[:2] + [lambda: epi_wr(acc, off, half, areg, 0)] + c[2:] + [lambda: epi_wr(acc, off, half, areg, 1)]
        if WM == "stag": return c + [lambda: epi_wr(acc, off, half, areg, 0), lambda: epi_wr(acc, off, half, areg, 1)]
        return c + [lambda: epi_wr(acc, off, half, areg)]
    def epi_ops(acc, slot, half=False):
        return tile_ops(acc, slot*4096, half)
    if PADS:
        for w_ in range(min(4, len(PADS))):
            a(f"s_cmp_eq_u32 s3, {w_}"); a(f"s_cbranch_scc1 L_pad{w_}")
        a.label("L_warm_ret")
    DRY = o("dry", None)
    if DRY is not None:
        a("s_mov_b64 exec, 0"); a("s_branch L_dry")
        a.label("L_dry_ret")
        a("s_mov_b64 exec, -1")
    def cbar(name):
        if DRY is not None:
            lab[0] += 1
            a(f"s_cbranch_execz L_nb{lab[0]}"); a("s_barrier"); a.label(f"L_nb{lab[0]}")
        else: a("s_barrier")
    vc.wait(["T", ("X", 0)])
    if X1P == "mid":
        for f in x1_ops(1, vc, CVX): f()
    H1 = 3
    EXT = [wreg(16, 0), wreg(16, 1), wreg(17, 0), wreg(17, 1)]
    tiles = p1_order
    nj = 2*len(tiles)
    def bufs(kb):
        if kb < 7: seq = [(FR1 + EXT)[(kb*nj + j) % 8] for j in range(nj)]
        elif kb == 7:
            seq = [(FR1 + EXT)[(kb*nj + j) % 8] if j < nj - 8 else None for j in range(nj)]
            prev = seq[nj-16:nj-8]
            seq[nj-8:] = [r for r in prev if r in EXT] + [r for r in prev if r in FR1]
        else:
            last = bufs(7)[-4:]
            seq = [last[j % 4] for j in range(nj)]
        return seq
    held = []; free_at = {}; done = [-1]
    pq = (p_ops(0, vc, CVX) if PBY != "L" else []) + (half_ops(1, 0, vc, CVX) if PBY == "C" else [])
    PST = o("pst", {4: 2, 5: 3, 6: 4, 7: 5}) if PBY == "C" else ({7: 9} if PBY == "M" else {})
    def stage(kb, SH=0):
        nonlocal held
        stamp(CS, f"a{kb}")
        pad(f"C{kb}")
        a("s_barrier")
        if kb == DRY: a.label("L_dry")
        stamp(CS, f"b{kb}")
        xo = x1_ops(kb+2, vc, CVX) if kb <= 6 else []
        if kb == 0 and X1P == "late":
            for f in x1_ops(1, vc, CVX): f()
        po = [pq.pop(0) for _ in range(PST.get(kb, 0))]
        jobs = [(t, s) for t in tiles for s in range(2)]
        SN = o("snake", True) and kb < 8
        if SN: jobs = [(t, s) for s in range(2) for t in tiles]
        bf = bufs(kb)
        nxt = [0]
        def rd():
            j = nxt[0]
            if j >= nj: return False
            fr = bf[j]
            if free_at.get(fr, -1) > done[0]: return False
            if j - (done[0] + 1 - kb*nj) >= 6: return False
            t, s = jobs[j]
            a(f"ds_read_b128 v[{fr}:{fr+3}], v{AC1 if s else AC0} offset:{t*2048}"); lc.issue(("a", kb, j))
            free_at[fr] = kb*nj + j; nxt[0] += 1
            return True
        wq = [(s, c) for s in range(2) for c in range(2)]
        def wrd():
            s, c = wq.pop(0); r = wreg(2*kb+s, c)
            a(f"ds_read_b128 v[{r}:{r+3}], v{B1 if c else B0} offset:{(kb&1)*16384 + s*2048 + c*1024}"); lc.issue(("w", kb, s))
        wrd(); wrd(); rd()
        for (job, fr, gj) in held:
            job(fr, 0)
            if wq: wrd()
            else: rd()
            job(fr, 1); done[0] = gj
            if wq: wrd()
            else: rd()
        while wq: wrd()
        while rd(): pass
        if o("xpos", "fast") == "start":
            while xo: xo.pop(0)()
        fillq = []
        for j in range(nj - H1):
            t, s = jobs[j]
            if j % 2 == 0 or kb == 8: lc.wait([("a", kb, min(j + (1 if kb < 8 else 0), nxt[0]-1)), ("w", kb, 1 if kb < 8 else s)])
            stamp(CS, f"j{kb}_{j}")
            sk = o("nomf") and kb < 8
            c0 = (j & 1) if SN else 0
            if not sk: mfma1(ACC + 8*t, 2*kb+s, c0, bf[j], kb == 0 and s == 0)
            rd()
            if not sk: mfma1(ACC + 8*t, 2*kb+s, 1-c0, bf[j], kb == 0 and s == 0)
            done[0] = kb*nj + j
            if nxt[0] - j - 1 < 5 and kb != 8: rd()
            if j % o("xsp", 2) == 1:
                if xo: xo.pop(0)()
                elif po: po.pop(0)()
            if kb == 8:
                if j >= 5 and j % 2 == 1 and wstage[jobs[j-4][0]] == 8:
                    tt = jobs[j-4][0]
                    if SH and j == 5: fillq += [lambda: None]*SH
                    fillq += epi_ops(ACC + 8*tt, p1_out[tt], half=(tt == F))
                for _ in range(o("e8", 1)):
                    if fillq: fillq.pop(0)()
        while rd(): pass
        assert nxt[0] == nj, (kb, nxt[0])
        while fillq: fillq.pop(0)()
        while xo: xo.pop(0)()
        while po: po.pop(0)()
        nb = slot1(kb+1) if kb < 8 else pslot(0)
        d = nb - slot1(kb)
        lc.wait_all()
        op = "v_add_u32" if d >= 0 else "v_subrev_u32"
        a(f"{op} v{AC0}, {abs(d)}, v{AC0}"); a(f"{op} v{AC1}, {abs(d)}, v{AC1}")
        if kb < 8: vc.wait(("X", kb+1))
        elif DRY == 8:
            lab[0] += 1
            a(f"s_cbranch_execz L_nb{lab[0]}"); vc.wait([("P", 0), ("P", 1)]); a.label(f"L_nb{lab[0]}")
        else: vc.wait([("P", 0), ("P", 1)])
        held = [((lambda fr, c, t=jobs[j][0], s=jobs[j][1], kb=kb: mfma1(ACC + 8*t, 2*kb+s, c, fr, kb == 0 and s == 0)), bf[j], kb*nj + j) for j in range(nj-H1, nj)]
    if o("cprio1"): a(f"s_setprio {o('cprio1')}")
    for kb in range(8): stage(kb)
    assert not pq
    def finale(SH):
        nonlocal held
        SHP = o("shp", 2)
        EB = o("eb", 29)
        if o("cprio"): a(f"s_setprio {o('cprio')}")
        stage(8, SH)
        held = [(job, fr) for (job, fr, gj) in held]
        XACC, YACC = ACC, ACC + 8
        PK = ACC + 36
        NB = 9 if E8 >= 5 else 6; HOLD = 3; WE = o("we", 3 if E8 >= 5 else 2)
        heldregs = [fr for (_, fr) in held]
        ring = [r for r in FR1 if r not in heldregs] + [ACC+16, ACC+20, ACC+24, ACC+28, ACC+32][:NB-4] + heldregs
        def pair_body(pi):
            nonlocal held
            jobs = [(b, ks) for b in range(2) for ks in range(18)]
            def rd(j):
                b, ks = jobs[j]; fr = ring[j % NB]
                a(f"ds_read_b128 v[{fr}:{fr+3}], v{AC1 if ks & 1 else AC0} offset:{b*18432 + (ks>>1)*2048}"); lc.issue(("p", j))
            pre = NB - HOLD
            hm_ = [(job, fr, c) for (job, fr) in held for c in range(2)]
            rd(0); rd(1); nxt = 2
            for (job, fr, c) in hm_:
                job(fr, c)
                if nxt < pre: rd(nxt); nxt += 1
            fillq = []
            for j in range(36 - HOLD):
                b, ks = jobs[j]
                if j % WE == 0: lc.wait(("p", min(j + WE - 1, 35)))
                acc = YACC if b else XACC
                stamp(CS, f"p{pi}_{j}")
                mfma1(acc, ks, 0, ring[j % NB], ks == 0)
                if nxt < 36 and nxt - NB < j: rd(nxt); nxt += 1
                mfma1(acc, ks, 1, ring[j % NB], ks == 0)
                if o("deep", True) and nxt < 36 and nxt - NB <= j and nxt - j - 1 < NB - 1 and not fillq: rd(nxt); nxt += 1
                if SH and j in (1, 22) and not fillq: fillq += [lambda: None]*SHP
                if j == 1:
                    if pi > 0: fillq += tile_ops(YACC, 0, areg=B0)
                    else:
                        for tt in p1_order:
                            if wstage[tt] == 9: fillq += epi_ops(ACC + 8*tt, p1_out[tt], half=(tt == F))
                if j == 22: fillq += tile_ops(XACC, 4096, areg=B0) if pi > 0 else tile_ops(XACC, 11*4096)
                if EB and pi > 0 and j == EB:
                    assert not fillq
                    keep = list(lc.ops)
                    lab[0] += 1
                    a(f"s_cmp_lg_u32 s42, {NP-1}"); a(f"s_cbranch_scc1 L_eb{lab[0]}")
                    lc.wait("ow"); a("s_barrier")
                    a.label(f"L_eb{lab[0]}")
                    lc.ops = keep
                if o("noepi"): fillq = []
                if fillq:
                    fillq.pop(0)()
                    if len(fillq) + (6 if j < 22 else 0) > 32 - j and fillq: fillq.pop(0)()
            assert not fillq and nxt == 36, (len(fillq), nxt)
            lc.wait_all()
            held = [((lambda fr, c, ks=jobs[j][1]: mfma1(YACC, ks, c, fr, False)), ring[j % NB]) for j in range(36-HOLD, 36)]
        stamp(CS, "a9")
        pad("C9")
        if DRY == 9:
            a("s_barrier"); a.label("L_dry")
        else: cbar(9)
        stamp(CS, "b9")
        pair_body(0)
        stamp(CS, "a10")
        pad("C10")
        a(f"s_mov_b32 s43, {(-2*PSTR) & 0xffffffff}")
        a(f"v_add_u32 v{B0}, {6*4096}, v{VO}")
        a("s_mov_b32 s42, 1")
        for it in range(3 if o("unroll") else 1):
            if not o("unroll"): a.label(f"L_p2{SH}")
            a(f"v_add_u32 v{AC0}, s43, v{AC0}"); a(f"v_add_u32 v{AC1}, s43, v{AC1}")
            a(f"s_mov_b32 s43, {PSTR}")
            a(f"v_xor_b32 v{B0}, 8192, v{B0}")
            cbar(10)
            if o("unroll"): stamp(CS, f"b{10+it}")
            lc.ops = []
            pair_body(1)
            if o("unroll"): pad(f"C{11+it}")
        if not o("unroll"):
            if DRY is not None: a("s_cbranch_execz L_dry_ret")
            a("s_add_u32 s42, s42, 1"); a(f"s_cmp_lt_u32 s42, {NP}"); a(f"s_cbranch_scc1 L_p2{SH}")
        stamp(CS, "a13")
        if not EB: a("s_barrier")
        stamp(CS, "b13")
        for (job, fr) in held:
            job(fr, 0); job(fr, 1)
        a(f"s_mov_b32 s52, {prow(NP-1, 1)*9216}")
        a("s_nop 6")
        for m in range(4): cvt1(YACC, YACC, m)
        a(f"buffer_store_dwordx4 v[{YACC}:{YACC+3}], v1, s[36:39], s52 offen {o('lastflag', STFLAG)}")
    if o("dup", False):
        import copy
        sv = (list(held), dict(free_at), done[0], list(lc.ops), list(vc.ops))
        a("s_cmp_ge_u32 s3, 2"); a("s_cbranch_scc1 L_copyb")
        finale(0)
        a("s_branch L_fin" if STAMP else "s_endpgm")
        a.label("L_copyb")
        held = sv[0]; free_at.clear(); free_at.update(sv[1]); done[0] = sv[2]; lc.ops = sv[3]; vc.ops = sv[4]
        finale(o("sh8", 2))
        a.label("L_fin")
    else:
        finale(0)
    if STAMP:
        a("s_waitcnt vmcnt(0)")
        a.label("L_stamp")
        a("s_memrealtime s[58:59]"); a(f"{MT} s[98:99]")
        a("s_getreg_b32 s96, hwreg(HW_REG_XCC_ID)"); a("s_getreg_b32 s97, hwreg(HW_REG_HW_ID)")
        a("s_waitcnt lgkmcnt(0)")
        a("s_mov_b32 s92, s98")
        if o("spin"):
            K_, wg_ = o("spin")
            a(f"s_cmp_lg_u32 s2, {wg_}"); a("s_cbranch_scc1 L_end")
            a("s_cmp_lg_u32 s3, 1"); a("s_cbranch_scc1 L_end")
            src = "s64" if CS else "s92"
            if K_ > 1000: a(f"s_mov_b32 s98, {K_}")
            else:
                a(f"s_sub_u32 s98, {src}, s62"); a(f"s_mul_i32 s98, s98, {K_}"); a("s_min_u32 s98, s98, 20000")
            a.label("L_spin")
            a("s_memrealtime s[58:59]"); a("s_waitcnt lgkmcnt(0)")
            a("s_sub_u32 s99, s58, s62"); a("s_cmp_lt_u32 s99, s98"); a("s_cbranch_scc1 L_spin")
            a("s_endpgm")
        a("s_mov_b32 s84, s56"); a("s_and_b32 s85, s57, 0xffff"); a("s_mov_b32 s86, 0x100000"); a("s_mov_b32 s87, 0x20000")
        a("s_lshl_b32 s98, s2, 3"); a("s_add_u32 s98, s98, s3"); a("s_lshl_b32 s98, s98, 6")
        vals = ["s60", "s58", "s62", "s92"] + [f"s{64+2*i}" for i in range(8)] + ["0", "0x5a5a1234", "s97", "s96"]
        a("v_mov_b32 v1, 0")
        for i, v in enumerate(vals):
            a(f"v_mov_b32 v2, {v}"); a(f"v_cmp_eq_u32 vcc, {i}, v0"); a("s_nop 1"); a("v_cndmask_b32 v1, v1, v2, vcc")
        a("v_lshlrev_b32 v2, 2, v0"); a("v_cmp_gt_u32 vcc, 16, v0"); a("s_and_saveexec_b64 s[100:101], vcc")
        a("buffer_store_dword v1, v2, s[84:87], s98 offen"); a("s_waitcnt vmcnt(0)")
    a.label("L_end")
    a(f".set CPL, (L_end-{NAME}_kernel+8191)/8192")
    open(out, "w").write(wrap(a.text(), (256,1,1), 512, LDS, 256, 102, 256, pre_align=".p2align 12\n"))

def st(*keys): return {k: i for i, k in enumerate(keys)}
if __name__ == "__main__":
    F3 = dict(stamp=True, rt=True, cs=st("b0", "b4", "b8", "b9", "b10", "b11", "b12", "b13"), ls=st("s", "w5", "c5", "b5", "a10", "a11", "a12", "a13"))
    B = dict(wr="spread", xsp=3)
    gen("v21.s", B)
    F6 = dict(B, stamp=True, rt=True, ls=st("a8", "a9", "a10", "a11", "a12", "b13"), cs=st("b0", "b8", "a9", "b9", "a10", "a13"))
    gen("v21a.s", dict(F6))
    gen("v21b.s", dict(F6, eb=None))
    gen("v21c.s", dict(F6, eb=28))
    gen("v21d.s", dict(F6, sp=[3, 9, 2, 2]))
    gen("v21e.s", dict(F6, ra=0))
    gen("v21f.s", dict(F6, pw9=3))
    gen("h21a.s", dict(B))
    gen("h21b.s", dict(B, eb=None))
    gen("h21c.s", dict(B, ct=[]))
    gen("h21d.s", dict(B, ra=0, su=0))
```
